```python
import torch

def _softmax(x, axis=-1):
    return torch.softmax(x, dim=axis)
def _gelu(x):
    return torch.nn.functional.gelu(x, approximate="tanh")
def _silu(x):
    return torch.nn.functional.silu(x)
def _sigmoid(x):
    return torch.sigmoid(x)
def _layernorm(x, axis=-1, eps=1e-5):
    m = x.mean(dim=axis, keepdim=True)
    v = x.var(dim=axis, keepdim=True, unbiased=False)
    return (x - m) / torch.sqrt(v + eps)
def _scatter_add(tgt, idx, src, axis=0):
    return tgt.clone().index_add_(axis, idx, src)
def _segment_sum(src, seg, n):
    out = torch.zeros((n,) + src.shape[1:], dtype=src.dtype)
    return out.index_add_(0, seg, src)
def _pad(x, pw):
    flat = tuple(v for pair in reversed(pw) for v in pair)
    return torch.nn.functional.pad(x, flat)

kernel_name = 'standalone__sequential_behavior_din__recsys'

def setup_inputs():

    _w = (lambda a: (lambda t: t.to(torch.bfloat16) if t.is_floating_point() else t)(torch.as_tensor(a)))
    B, L, D = 4096, 200, 128
    H = D
    return {
        "target": _w((lambda *s: torch.randn(*s, dtype=torch.bfloat16) * 1.6)(B, D)),
        "hist": _w((lambda *s: torch.randn(*s, dtype=torch.bfloat16) * 1.6)(B, L, D)),
        "mask": _w((lambda lo, hi, *s: torch.randint(lo, hi, s))(0, 2, B, L).to(float)),
        "w1": _w((lambda *s: torch.randn(*s, dtype=torch.bfloat16) * 1.6)(4 * D, H) * (4 * D) ** -0.5),
        "b1": _w((lambda *s: torch.randn(*s, dtype=torch.bfloat16) * 3.2)(H) * 0.1),
        "w2": _w((lambda *s: torch.randn(*s, dtype=torch.bfloat16) * 0.05)(H, 1) * H ** -0.5),
        "b2": _w((lambda *s: torch.randn(*s, dtype=torch.bfloat16) * 0.05)(1) * 0.1),
    }

def reference(target, hist, mask, w1, b1, w2, b2):
    L = hist.shape[1]
    tgt = (lambda x, n, axis: torch.repeat_interleave(x, n, dim=axis))(target[:, None, :], L, axis=1)
    feat = torch.concatenate([hist, tgt, hist - tgt, hist * tgt], axis=-1)
    h = _sigmoid(feat @ w1 + b1)
    scores = (h @ w2 + b2)[..., 0] * mask
    return torch.einsum('bl,bld->bd', scores, hist)
```

```python
import re

TRANS = ("v_exp_", "v_log_", "v_rcp_", "v_rsq_", "v_sqrt_", "v_sin_", "v_cos_")

def _regs(tok):
    tok = tok.strip()
    tok = re.sub(r"^-|^\||\|$", "", tok)
    m = re.fullmatch(r"([vs])\[(\d+):(\d+)\]", tok)
    if m:
        return [(m.group(1), i) for i in range(int(m.group(2)), int(m.group(3)) + 1)]
    m = re.fullmatch(r"([vs])(\d+)", tok)
    if m:
        return [(m.group(1), int(m.group(2)))]
    if tok == "vcc":
        return [("s", "vcc")]
    if tok in ("vcc_lo", "vcc_hi"):
        return [("s", "vcc")]
    if tok == "m0":
        return [("s", "m0")]
    if tok in ("exec", "exec_lo", "exec_hi"):
        return [("s", "exec")]
    return []

class Ins:
    def __init__(self, text):
        self.text = text
        t = text.split(";")[0].strip()
        self.label = None
        self.op = None
        self.reads = set(); self.writes = set()
        self.srcC = set(); self.srcAB = set()
        self.kind = "other"
        if not t:
            self.kind = "blank"; return
        if t.endswith(":"):
            self.kind = "label"; self.label = t[:-1]; return
        parts = t.split(None, 1)
        op = parts[0]; self.op = op
        rest = parts[1] if len(parts) > 1 else ""
        ops = [o.strip() for o in rest.split(",")] if rest else []
        if ops:
            last = ops[-1].split()
            self.mods = last[1:]
            ops[-1] = last[0] if last else ""
        else:
            self.mods = []
        self.ops = ops
        R = lambda i: set(_regs(ops[i])) if i < len(ops) else set()
        if op.startswith("v_mfma"):
            self.kind = "mfma"
            self.passes = 8 if "32x32x16" in op else 4
            self.writes = R(0); self.srcAB = R(1) | R(2); self.srcC = R(3)
            self.reads = self.srcAB | self.srcC
            self.dtok = ops[0]; self.ctok = ops[3]
        elif op.startswith("v_"):
            self.kind = "valu"
            self.trans = op.startswith(TRANS)
            if op.startswith("v_cmp"):
                if op.startswith("v_cmpx"):
                    self.writes = {("s", "exec")}
                self.writes |= R(0)
                for i in range(1, len(ops)): self.reads |= R(i)
            elif op.startswith("v_permlane") and "swap" in op:
                self.writes = R(0) | R(1); self.reads = R(0) | R(1)
            else:
                self.writes = R(0)
                for i in range(1, len(ops)): self.reads |= R(i)
                if op.startswith(("v_cndmask_b32",)) and len(ops) == 3:
                    self.reads.add(("s", "vcc"))
                if op.startswith(("v_fma_mix", "v_mac", "v_fmac", "v_writelane")) or "dst_unused:UNUSED_PRESERVE" in self.mods:
                    self.reads |= R(0)
            self.dpp = any(m.startswith(("quad_perm", "row_", "wave_", "bank_mask")) for m in self.mods)
            self.sdwa_dst = any(m.startswith("dst_sel:") and m != "dst_sel:DWORD" for m in self.mods) or op.startswith("v_fma_mix")
        elif op.startswith("ds_"):
            self.kind = "ds"
            if op.startswith("ds_read"):
                self.writes = R(0); self.reads = R(1)
                if "d16" in op: self.reads |= R(0)
            else:
                for i in range(len(ops)): self.reads |= R(i)
        elif op.startswith(("buffer_", "global_")):
            self.kind = "vmem"
            self.lds = "lds" in self.mods
            if op.startswith("buffer_load") and not self.lds:
                self.writes = R(0)
                for i in range(1, len(ops)): self.reads |= R(i)
                if "d16" in op: self.reads |= R(0)
            else:
                for i in range(len(ops)): self.reads |= R(i)
            if self.lds: self.reads.add(("s", "m0"))
            self.wide_store = op.startswith("buffer_store_dwordx4") or op.startswith("buffer_store_dwordx3")
        elif op.startswith("s_"):
            self.kind = "salu"
            if op == "s_nop":
                self.nop = int(ops[0], 0) + 1
            if op.startswith(("s_cbranch", "s_branch")):
                self.target = ops[0]
            elif op.startswith(("s_cmp", "s_bitcmp", "s_waitcnt", "s_barrier", "s_endpgm", "s_setprio", "s_nop")):
                for i in range(len(ops)): self.reads |= R(i)
            else:
                self.writes = R(0)
                for i in range(1, len(ops)): self.reads |= R(i)
                if op.startswith("s_movrel"): self.reads.add(("s", "m0"))
    def states(self):
        if self.kind in ("blank", "label"): return 0
        if self.op == "s_nop": return self.nop
        return 1

def _need(p, c):
    n = 0
    pv = {r for r in p.writes if r[0] == "v"}
    ps = {r for r in p.writes if r[0] == "s"}
    if p.kind == "mfma":
        full = 12 if p.passes == 8 else 8
        if c.kind == "mfma":
            if pv & c.srcAB: n = max(n, full)
            if pv & c.srcC:
                if not (c.ctok == p.dtok and c.passes == p.passes):
                    n = max(n, 10 if p.passes == 8 else 6)
            if pv & c.writes and not (c.dtok == p.dtok and c.ctok == p.dtok):
                n = max(n, 10 if p.passes == 8 else 6)
        elif c.kind in ("valu", "ds", "vmem"):
            if pv & (c.reads | c.writes): n = max(n, full)
        if c.kind == "valu" and (p.srcC & c.writes):
            n = max(n, 7 if p.passes == 8 else 3)
        if c.kind in ("ds", "vmem") and (p.srcC & c.writes):
            n = max(n, 7 if p.passes == 8 else 3)
    elif p.kind == "valu":
        if c.kind == "mfma" and pv & c.reads: n = max(n, 2)
        if c.kind == "valu":
            if p.trans and not c.trans and pv & c.reads: n = max(n, 1)
            if p.trans and c.trans and pv & c.reads: n = max(n, 1)
            if c.op.startswith(("v_readlane", "v_readfirstlane")) and pv & c.reads: n = max(n, 1)
            if c.dpp and pv & c.reads: n = max(n, 2)
            if c.op.startswith("v_permlane") and pv & c.reads: n = max(n, 2)
            if p.sdwa_dst and pv & (c.reads | c.writes): n = max(n, 1)
            if ps & c.reads:
                n = max(n, 4 if c.op.startswith(("v_readlane", "v_writelane")) else 2)
        if c.kind == "vmem" and ps & c.reads: n = max(n, 5)
        if c.kind == "salu" and ps & c.reads: n = max(n, 1)
    elif p.kind == "salu":
        if ("s", "m0") in ps:
            if c.kind == "vmem" and c.lds: n = max(n, 1)
            if c.kind == "salu" and c.op.startswith("s_movrel"): n = max(n, 1)
    elif p.kind == "vmem":
        if p.wide_store and c.kind == "valu" and ({r for r in p.reads if r[0] == "v"} & c.writes): n = max(n, 2)
    return n

class Asm:
    def __init__(self):
        self.lines = []
    def __call__(self, s):
        for l in s.split("\n"):
            l = l.strip()
            if l: self.lines.append(l)
    def label(self, name): self.lines.append(name + ":")
    def finalize(self, maxlook=20):
        ins = [Ins(l) for l in self.lines]
        labels = {x.label: i for i, x in enumerate(ins) if x.kind == "label"}
        srcs = {}
        for i, x in enumerate(ins):
            if x.kind == "salu" and hasattr(x, "target"):
                srcs.setdefault(labels[x.target], []).append(i)
        pad = [0] * len(ins)
        total = 0
        def required(ci):
            c = ins[ci]
            best = 0
            stack = [(ci, 0)]
            seen = {}
            while stack:
                i, dist = stack.pop()
                preds = []
                if i > 0:
                    pr = ins[i - 1]
                    if not (pr.kind == "salu" and pr.op in ("s_branch", "s_endpgm")):
                        preds.append(i - 1)
                if ins[i].kind == "label":
                    preds += srcs.get(i, [])
                for p in preds:
                    d = dist + (pad[i] if i != ci else 0) if p == i - 1 else dist
                    x = ins[p]
                    if x.kind not in ("label", "blank"):
                        need = _need(x, c)
                        if need > d: best = max(best, need - d)
                    nd = d + x.states()
                    if nd < maxlook and seen.get(p, 1 << 30) > nd:
                        seen[p] = nd
                        stack.append((p, nd))
            return best
        for i, c in enumerate(ins):
            if c.kind in ("label", "blank"): continue
            pad[i] = required(i)
            total += pad[i]
        out = []
        for i, c in enumerate(ins):
            k = pad[i]
            while k > 0:
                n = min(k, 16)
                out.append(f"s_nop {n-1}")
                k -= n
            out.append(c.text if c.kind == "label" else "  " + c.text)
        self.padded = total
        return "\n".join(out)
```

```python
import sys
from asmlib import Asm

NAME = "standalone__sequential_behavior_din__recsys"
DEBUG_TS = "--ts" in sys.argv

RING = 0
MISC = 65536
IDX = MISC
MASKL = IDX + 3584
PART = MASKL + 3584
BIAS = PART + 512
DIAG = BIAS + 4096
CNT = DIAG + 4224
LDS_BYTES = 81920
assert CNT == MISC + 16000

class V: pass
v = V()
def vr(a, n=1):
    return f"v{a}" if n == 1 else f"v[{a}:{a+n-1}]"
v.aH = 0
v.aT = 4
v.idxA = 8
v.idx = 9
v.lane_off = 10
v.maskA = 11
v.m0 = 12
v.m1 = 13
v.partW = 14
v.partR = 15
v.aDiag = 16
v.diagW = 18
v.biasA = 19
v.outA = 20
v.tmp = 21
v.b2c = 22
v.Q = 24
v.D3 = 28
v.D2 = 32
v.A3 = 40
v.BR = 48
v.Y0 = 64
v.Y1 = 80
v.H = 96
v.WAC = 128
v.WD = 192
v.WE = 224
NVGPR = 256

sHist = 4; sW1 = 8; sOut = 12; sTgt = 16; sMask = 20; sB1 = 24; sW2 = 28; sB2 = 32
sW = 36
sWoff = 37
sI = 38
sNT = 39
sFIRST = 40
sLAST2 = 42
sDelta = 44
sStep = 45
sSel = 46
sC = 48
sT0 = 50
sP = 70
sBal = 80
sTS = 96

a = Asm()
TSREG = {0: 96, 1: 97, 2: 98, 3: 99, 4: 100, 5: 101}
def ts(k):
    if DEBUG_TS:
        a(f"s_memrealtime s[{sT0+18}:{sT0+19}]")
        a("s_waitcnt lgkmcnt(0)")
        a(f"s_mov_b32 s{TSREG[k]}, s{sT0+18}")

def srd(r): return f"s[{r}:{r+3}]"
def sp(r): return f"s[{r}:{r+1}]"

def dma(voff, srdreg, soff, slot, nt):
    f = " nt" if nt else ""
    a(f"s_add_u32 m0, s{sWoff}, {slot*8192}")
    a(f"buffer_load_dwordx4 {vr(voff)}, {srd(srdreg)}, {soff} offen{f} lds")
    a(f"s_add_u32 m0, s{sWoff}, {slot*8192 + 4096 - 128}")
    a(f"buffer_load_dwordx4 {vr(voff)}, {srd(srdreg)}, {soff} offen offset:128{f} lds")

MF32 = "v_mfma_f32_32x32x16_bf16"
MF16 = "v_mfma_f32_16x16x32_bf16"

a("s_cmp_ge_u32 s2, 512")
a("s_cbranch_scc1 L_end")
ts(0)
a(f"s_load_dwordx2 {sp(sTgt)}, s[0:1], 0")
a(f"s_load_dwordx2 {sp(sHist)}, s[0:1], 8")
a(f"s_load_dwordx2 {sp(sMask)}, s[0:1], 16")
a(f"s_load_dwordx2 {sp(sW1)}, s[0:1], 24")
a(f"s_load_dwordx2 {sp(sB1)}, s[0:1], 32")
a(f"s_load_dwordx2 {sp(sW2)}, s[0:1], 40")
a(f"s_load_dwordx2 {sp(sB2)}, s[0:1], 48")
a(f"s_load_dwordx2 {sp(sOut)}, s[0:1], 56")
tLane, tHi, tM, tQ, tN4, tA, tB, tC, tD, tE = [v.Y0 + i for i in range(10)]
a(f"v_lshrrev_b32 {vr(tA)}, 6, v0")
a(f"v_and_b32 {vr(tLane)}, 63, v0")
a(f"v_readfirstlane_b32 s{sW}, {vr(tA)}")
a(f"v_lshrrev_b32 {vr(tHi)}, 5, {vr(tLane)}")
a(f"v_and_b32 {vr(tM)}, 31, {vr(tLane)}")
a(f"v_lshrrev_b32 {vr(tQ)}, 4, {vr(tLane)}")
a(f"v_and_b32 {vr(tN4)}, 15, {vr(tLane)}")
a(f"s_lshl_b32 s{sWoff}, s{sW}, 10")
a(f"s_mov_b32 s{sC}, 0xBFB8AA3B")
a(f"v_lshlrev_b32 {vr(tA)}, 3, {vr(tLane)}")
a(f"s_mul_i32 s{sT0}, s{sW}, 800")
a(f"v_add_u32 {vr(tA)}, s{sT0}, {vr(tA)}")
a(f"v_mov_b32 {vr(tB)}, 0x10000")
a(f"v_cmp_gt_u32 vcc, 50, {vr(tLane)}")
a(f"v_cndmask_b32 {vr(tA)}, {vr(tB)}, {vr(tA)}, vcc")
a("s_waitcnt lgkmcnt(0)")
a(f"s_mul_i32 s{sT0}, s2, 3200")
a(f"s_add_u32 s{sMask}, s{sMask}, s{sT0}")
a(f"s_addc_u32 s{sMask+1}, s{sMask+1}, 0")
a(f"s_mov_b32 s{sMask+2}, 3200")
a(f"s_mov_b32 s{sMask+3}, 0x00020000")
MK = v.Y1
a(f"buffer_load_dwordx2 {vr(MK,2)}, {vr(tA)}, {srd(sMask)}, 0 offen")
a(f"buffer_load_dwordx2 {vr(MK+2,2)}, {vr(tA)}, {srd(sMask)}, 0 offen offset:400")
a(f"s_mov_b32 s{sW1+2}, 131072")
a(f"s_mov_b32 s{sW1+3}, 0x00020000")
a(f"v_lshrrev_b32 {vr(tB)}, 3, {vr(tLane)}")
a(f"s_lshl_b32 s{sT0}, s{sW}, 3")
a(f"v_add_u32 {vr(tB)}, s{sT0}, {vr(tB)}")
def phi(dst, r, t):
    a(f"v_lshrrev_b32 {vr(dst)}, 2, {vr(r)}")
    a(f"v_and_b32 {vr(dst)}, 4, {vr(dst)}")
    a(f"v_lshrrev_b32 {vr(t)}, 1, {vr(r)}")
    a(f"v_and_b32 {vr(t)}, 3, {vr(t)}")
    a(f"v_or_b32 {vr(dst)}, {vr(dst)}, {vr(t)}")
phi(tC, tB, tD)
a(f"v_and_b32 {vr(tD)}, 7, {vr(tLane)}")
a(f"v_xor_b32 {vr(tC)}, {vr(tC)}, {vr(tD)}")
a(f"v_lshlrev_b32 {vr(v.lane_off)}, 4, {vr(tC)}")
a(f"v_lshl_add_u32 {vr(v.tmp)}, {vr(tB)}, 8, {vr(v.lane_off)}")
a(f"v_lshlrev_b32 {vr(v.idxA)}, 1, {vr(tB)}")
a(f"v_add_u32 {vr(v.idxA)}, {IDX}, {vr(v.idxA)}")
a(f"s_lshl_b32 s{sT0}, s2, 11")
a(f"s_add_u32 s{sTgt}, s{sTgt}, s{sT0}")
a(f"s_addc_u32 s{sTgt+1}, s{sTgt+1}, 0")
a(f"s_mov_b32 s{sTgt+2}, 2048")
a(f"s_mov_b32 s{sTgt+3}, 0x00020000")
a(f"s_lshl_b32 s{sT0}, s{sW}, 6")
a(f"v_lshlrev_b32 {vr(tB)}, 1, {vr(tM)}")
a(f"v_add_u32 {vr(tB)}, s{sT0}, {vr(tB)}")
for j in range(8):
    op = "buffer_load_short_d16" if j % 2 == 0 else "buffer_load_short_d16_hi"
    a(f"{op} {vr(v.WE + j)}, {vr(tB)}, {srd(sTgt)}, 0 offen offset:{j*256}")
for s in range(8):
    row0 = (0 if s < 4 else 256) + 32 * (s & 3)
    a(f"s_mov_b32 s{sT0+1}, {row0*256}")
    dma(v.tmp, sW1, f"s{sT0+1}", s, False)
NA = 16
a(f"v_lshrrev_b32 {vr(tC)}, 2, {vr(tM)}")
a(f"v_lshlrev_b32 {vr(tC)}, 8, {vr(tC)}")
a(f"v_lshl_add_u32 {vr(tC)}, {vr(tHi)}, 4, {vr(tC)}")
for ks in range(8):
    a(f"buffer_load_dwordx4 {vr(v.WD + 4*ks, 4)}, {vr(tC)}, {srd(sTgt)}, 0 offen offset:{ks*32}")
a(f"s_mov_b32 s{sB1+2}, 256")
a(f"s_mov_b32 s{sB1+3}, 0x00020000")
a(f"s_mov_b32 s{sW2+2}, 256")
a(f"s_mov_b32 s{sW2+3}, 0x00020000")
a(f"s_mov_b32 s{sB2+2}, 2")
a(f"s_mov_b32 s{sB2+3}, 0x00020000")
a(f"s_lshl_b32 s{sT0}, s{sW}, 6")
a(f"v_lshlrev_b32 {vr(tD)}, 3, {vr(tHi)}")
a(f"v_add_u32 {vr(tD)}, s{sT0}, {vr(tD)}")
B1T = v.WAC
for i in range(4):
    a(f"buffer_load_dwordx2 {vr(B1T + 2*i, 2)}, {vr(tD)}, {srd(sB1)}, 0 offen offset:{16*i}")
a(f"v_xor_b32 {vr(tA)}, {vr(tQ)}, {vr(tN4)}")
a(f"v_and_b32 {vr(tA)}, 1, {vr(tA)}")
a(f"v_lshrrev_b32 {vr(tB)}, 1, {vr(tQ)}")
a(f"v_lshlrev_b32 {vr(tB)}, 3, {vr(tB)}")
a(f"v_add_u32 {vr(tB)}, s{sT0}, {vr(tB)}")
a(f"v_mov_b32 {vr(tC)}, 0x10000")
a(f"v_cmp_eq_u32 vcc, 0, {vr(tA)}")
a(f"v_cndmask_b32 {vr(tB)}, {vr(tC)}, {vr(tB)}, vcc")
for g in range(2):
    for hh in range(2):
        a(f"buffer_load_dwordx2 {vr(v.A3 + 4*g + 2*hh, 2)}, {vr(tB)}, {srd(sW2)}, 0 offen offset:{32*g + 16*hh}")
a(f"v_mov_b32 {vr(tC)}, 0")
a(f"buffer_load_ushort {vr(v.b2c)}, {vr(tC)}, {srd(sB2)}, 0 offen")
NOTHER = 8 + 4 + 4 + 1
a(f"s_mul_i32 s{sT0}, s2, {8*51200}")
a(f"s_add_u32 s{sHist}, s{sHist}, s{sT0}")
a(f"s_addc_u32 s{sHist+1}, s{sHist+1}, 0")
a(f"s_mov_b32 s{sHist+2}, {8*51200}")
a(f"s_mov_b32 s{sHist+3}, 0x00020000")
a(f"s_lshl_b32 s{sT0}, s2, 11")
a(f"s_add_u32 s{sOut}, s{sOut}, s{sT0}")
a(f"s_addc_u32 s{sOut+1}, s{sOut+1}, 0")
a(f"s_mov_b32 s{sOut+2}, 256")
a(f"s_mov_b32 s{sOut+3}, 0x00020000")
a(f"v_lshlrev_b32 {vr(tA)}, 4, v0")
a(f"v_add_u32 {vr(tA)}, {MISC}, {vr(tA)}")
a(f"v_mov_b32 {vr(tB)}, 0")
a(f"v_cmp_gt_u32 vcc, 224, v0")
F4 = v.H
a(f"v_mov_b32 {vr(F4+4)}, 0")
a(f"v_mov_b32 {vr(F4+5)}, 0")
a(f"v_mov_b32 {vr(F4+6)}, 0")
a(f"v_mov_b32 {vr(F4+7)}, 0")
a(f"v_mov_b32 {vr(tC)}, -1")
a(f"v_cndmask_b32 {vr(F4)}, {vr(tB)}, {vr(tC)}, vcc")
a(f"v_mov_b32 {vr(F4+1)}, {vr(F4)}")
a(f"v_mov_b32 {vr(F4+2)}, {vr(F4)}")
a(f"v_mov_b32 {vr(F4+3)}, {vr(F4)}")
a(f"ds_write_b128 {vr(tA)}, {vr(F4,4)}")
a(f"ds_write_b128 {vr(tA)}, {vr(F4+4,4)} offset:4096")
a(f"ds_write_b128 {vr(tA)}, {vr(F4+4,4)} offset:8192")
a(f"v_add_u32 {vr(tA)}, 12288, {vr(tA)}")
a(f"v_min_u32 {vr(tA)}, {CNT-16}, {vr(tA)}")
a(f"ds_write_b128 {vr(tA)}, {vr(F4+4,4)}")

phi(tA, tM, tB)
a(f"v_xor_b32 {vr(tA)}, {vr(tA)}, {vr(tHi)}")
a(f"v_lshlrev_b32 {vr(tB)}, 7, {vr(tM)}")
for k in range(4):
    a(f"v_xor_b32 {vr(tC)}, {2*k}, {vr(tA)}")
    a(f"v_lshl_add_u32 {vr(v.aH+k)}, {vr(tC)}, 4, {vr(tB)}")
a(f"v_lshrrev_b32 {vr(tA)}, 2, {vr(tN4)}")
a(f"v_and_b32 {vr(tB)}, 1, {vr(tA)}")
a(f"v_lshlrev_b32 {vr(tB)}, 4, {vr(tB)}")
a(f"v_lshrrev_b32 {vr(tA)}, 1, {vr(tA)}")
a(f"v_add_u32 {vr(tB)}, {vr(tA)}, {vr(tB)}")
a(f"v_lshl_add_u32 {vr(tB)}, {vr(tQ)}, 2, {vr(tB)}")
a(f"v_and_b32 {vr(tC)}, 3, {vr(tN4)}")
a(f"v_lshrrev_b32 {vr(tD)}, 1, {vr(tC)}")
a(f"s_and_b32 s{sT0}, s{sW}, 1")
a(f"s_lshl_b32 s{sT0}, s{sT0}, 2")
a(f"v_or_b32 {vr(tD)}, s{sT0}, {vr(tD)}")
a(f"v_and_b32 {vr(tC)}, 1, {vr(tC)}")
a(f"v_lshlrev_b32 {vr(tC)}, 3, {vr(tC)}")
a(f"s_lshr_b32 s{sT0+1}, s{sW}, 1")
a(f"s_lshl_b32 s{sT0+1}, s{sT0+1}, 12")
a(f"v_add_u32 {vr(tC)}, s{sT0+1}, {vr(tC)}")
tF, tG = v.Y0 + 10, v.Y0 + 11
for u in range(2):
    a(f"v_add_u32 {vr(tE)}, {2*u}, {vr(tB)}")
    phi(tF, tE, tG)
    a(f"v_xor_b32 {vr(tF)}, {vr(tF)}, {vr(tD)}")
    a(f"v_lshl_add_u32 {vr(tE)}, {vr(tE)}, 7, {vr(tC)}")
    for dt in range(2):
        a(f"v_xor_b32 {vr(tG)}, {2*dt}, {vr(tF)}")
        a(f"v_lshl_add_u32 {vr(v.aT + 2*u + dt)}, {vr(tG)}, 4, {vr(tE)}")
aW = v.BR
a(f"v_and_b32 {vr(tE)}, 1, {vr(tQ)}")
a(f"v_lshl_or_b32 {vr(tD)}, {vr(tE)}, 1, {vr(tD)}")
a(f"v_lshrrev_b32 {vr(tA)}, 2, {vr(tN4)}")
a(f"v_lshl_add_u32 {vr(tB)}, {vr(tHi)}, 3, {vr(tA)}")
for f in range(2):
    for u in range(2):
        a(f"v_add_u32 {vr(tE)}, {16*f + 4*u}, {vr(tB)}")
        phi(tF, tE, tG)
        a(f"v_xor_b32 {vr(tF)}, {vr(tF)}, {vr(tD)}")
        a(f"v_lshl_add_u32 {vr(tE)}, {vr(tE)}, 7, {vr(tC)}")
        a(f"v_lshl_add_u32 {vr(aW + 2*f + u)}, {vr(tF)}, 4, {vr(tE)}")
a(f"s_lshl_b32 s{sT0}, s{sW}, 6")
a(f"s_add_u32 s{sT0}, s{sT0}, {PART}")
a(f"v_lshlrev_b32 {vr(tA)}, 2, {vr(tN4)}")
a(f"v_add_u32 {vr(v.partW)}, s{sT0}, {vr(tA)}")
a(f"v_and_b32 {vr(tA)}, 3, {vr(tN4)}")
a(f"v_lshlrev_b32 {vr(tA)}, 6, {vr(tA)}")
a(f"v_lshl_add_u32 {vr(tA)}, {vr(tQ)}, 4, {vr(tA)}")
a(f"v_add_u32 {vr(v.partR)}, {PART}, {vr(tA)}")
a(f"v_lshlrev_b32 {vr(tA)}, 1, {vr(tN4)}")
a(f"v_add_u32 {vr(v.maskA)}, {MASKL - 64}, {vr(tA)}")
a(f"v_mov_b32 {vr(v.m0)}, 0")
a(f"v_mov_b32 {vr(v.m1)}, 0")
a(f"v_and_b32 {vr(tA)}, 0x13, {vr(tM)}")
a(f"v_lshrrev_b32 {vr(tB)}, 1, {vr(tM)}")
a(f"v_and_b32 {vr(tB)}, 4, {vr(tB)}")
a(f"v_or_b32 {vr(tA)}, {vr(tA)}, {vr(tB)}")
a(f"v_lshlrev_b32 {vr(tB)}, 1, {vr(tM)}")
a(f"v_and_b32 {vr(tB)}, 8, {vr(tB)}")
a(f"v_or_b32 {vr(tA)}, {vr(tA)}, {vr(tB)}")
a(f"v_lshrrev_b32 {vr(tB)}, 2, {vr(tM)}")
a(f"v_and_b32 {vr(tB)}, 1, {vr(tB)}")
a(f"v_xor_b32 {vr(tB)}, {vr(tB)}, {vr(tHi)}")
a(f"v_lshrrev_b32 {vr(tC)}, 4, {vr(tM)}")
a(f"v_lshl_or_b32 {vr(tC)}, {vr(tB)}, 1, {vr(tC)}")
a(f"v_lshlrev_b32 {vr(tD)}, 4, {vr(tA)}")
a(f"v_mov_b32 {vr(tE)}, 512")
for f in range(2):
    a(f"v_cmp_eq_u32 vcc, {f}, {vr(tC)}")
    a(f"v_cndmask_b32 {vr(tF)}, {vr(tE)}, {vr(tD)}, vcc")
    a(f"v_add_u32 {vr(v.aDiag+f)}, {DIAG}, {vr(tF)}")
a(f"v_and_b32 {vr(tD)}, 7, {vr(tA)}")
a(f"v_lshrrev_b32 {vr(tD)}, 1, {vr(tD)}")
a(f"v_lshl_add_u32 {vr(tD)}, {vr(tC)}, 2, {vr(tD)}")
a(f"v_and_b32 {vr(tE)}, 1, {vr(tM)}")
a(f"v_lshlrev_b32 {vr(tE)}, 4, {vr(tE)}")
a(f"v_mov_b32 {vr(tF)}, 0x3F80")
a(f"v_lshlrev_b32 {vr(tE)}, {vr(tE)}, {vr(tF)}")
a(f"v_mov_b32 {vr(tF)}, 0")
for f in range(2):
    for rho in range(4):
        a(f"v_cmp_eq_u32 vcc, {4*f+rho}, {vr(tD)}")
        a(f"v_cndmask_b32 {vr(v.D2 + 4*f + rho)}, {vr(tF)}, {vr(tE)}, vcc")
a(f"s_mul_i32 s{sT0}, s{sW}, 528")
a(f"s_add_u32 s{sT0}, s{sT0}, {DIAG}")
a(f"v_and_b32 {vr(tA)}, 7, {vr(tM)}")
a(f"v_lshlrev_b32 {vr(tA)}, 1, {vr(tA)}")
a(f"v_lshl_add_u32 {vr(tA)}, {vr(tM)}, 4, {vr(tA)}")
a(f"v_add_u32 {vr(v.diagW)}, s{sT0}, {vr(tA)}")
a(f"s_lshl_b32 s{sT0}, s{sW}, 7")
a(f"s_add_u32 s{sT0}, s{sT0}, {BIAS}")
a(f"v_lshlrev_b32 {vr(tA)}, 4, {vr(tHi)}")
a(f"v_add_u32 {vr(v.biasA)}, s{sT0}, {vr(tA)}")
tBW = v.BR + 4
a(f"v_lshrrev_b32 {vr(tA)}, 2, {vr(tM)}")
a(f"v_lshl_add_u32 {vr(tBW)}, {vr(tA)}, 9, {vr(v.biasA)}")
a(f"s_lshl_b32 s{sT0}, s{sW}, 6")
a(f"v_lshlrev_b32 {vr(tA)}, 1, {vr(tLane)}")
a(f"v_add_u32 {vr(tA)}, s{sT0}, {vr(tA)}")
a(f"v_mov_b32 {vr(tB)}, 0x40000000")
a(f"v_cmp_gt_u32 vcc, 32, {vr(tLane)}")
a(f"v_cndmask_b32 {vr(v.outA)}, {vr(tB)}, {vr(tA)}, vcc")
a(f"s_mov_b32 s{sSel}, 0xFFFF0000")
a(f"s_mov_b32 s{sSel+1}, 0xFFFF0000")

a(f"s_waitcnt vmcnt({8 + NA + NOTHER})")
tP = v.Y1 + 4
for b in range(2):
    for e in range(4):
        src = MK + 2*b + (e >> 1)
        lit = "0x7fff" if e % 2 == 0 else "0x7fff0000"
        bal = sBal + 2 * (4*b + e)
        a(f"v_and_b32 {vr(tA)}, {lit}, {vr(src)}")
        a(f"v_cmp_ne_u32 {sp(bal)}, 0, {vr(tA)}")
for b in range(2):
    for e in range(4):
        bal = sBal + 2 * (4*b + e)
        a(f"v_mbcnt_lo_u32_b32 {vr(tP + 4*b + e)}, s{bal}, 0")
        a(f"v_mbcnt_hi_u32_b32 {vr(tP + 4*b + e)}, s{bal+1}, {vr(tP + 4*b + e)}")
        a(f"s_bcnt1_i32_b64 s{sT0 + 4*b + e}, {sp(bal)}")
for b in range(2):
    t0 = sT0 + 4*b
    a(f"s_add_u32 s{sT0+10}, s{t0}, s{t0+1}")
    a(f"s_add_u32 s{sT0+11}, s{sT0+10}, s{t0+2}")
    a(f"s_add_u32 s{sT0+8+b}, s{sT0+11}, s{t0+3}")
    a(f"s_mov_b32 s{t0+1}, s{t0}")
    a(f"s_mov_b32 s{t0}, 0")
    a(f"s_mov_b32 s{t0+2}, s{sT0+10}")
    a(f"s_mov_b32 s{t0+3}, s{sT0+11}")
    a(f"s_add_u32 s{sT0+12+b}, s{sT0+8+b}, 31")
    a(f"s_lshr_b32 s{sT0+12+b}, s{sT0+12+b}, 5")
    a(f"s_max_u32 s{sT0+12+b}, s{sT0+12+b}, 1")
a(f"s_lshl_b32 s{sT0+14}, s{sW}, 3")
a(f"s_add_u32 s{sT0+14}, s{sT0+14}, {CNT}")
a(f"v_mov_b32 {vr(tA)}, s{sT0+14}")
a(f"v_mov_b32 {vr(tF)}, s{sT0+12}")
a(f"v_mov_b32 {vr(tF+1)}, s{sT0+13}")
assert tF % 2 == 0
a(f"ds_write_b64 {vr(tA)}, {vr(tF,2)}")
a("s_waitcnt lgkmcnt(0)")
a("s_barrier")
ts(1)
tR = v.H + 8
a(f"v_mov_b32 {vr(tA)}, {CNT}")
a(f"ds_read_b128 {vr(tR,4)}, {vr(tA)}")
a(f"ds_read_b128 {vr(tR+4,4)}, {vr(tA)} offset:16")
a(f"s_waitcnt vmcnt({NA + NOTHER})")
for k in range(4):
    a(f"v_and_b32 {vr(v.WE+2*k)}, 0xffff, {vr(v.WE+2*k)}")
    a(f"v_and_b32 {vr(v.WE+2*k+1)}, 0xffff0000, {vr(v.WE+2*k+1)}")
    a(f"v_or_b32 {vr(v.Q+k)}, {vr(v.WE+2*k)}, {vr(v.WE+2*k+1)}")
a(f"ds_write_b16 {vr(v.diagW)}, {vr(v.Q)}")
def qshift():
    for k in range(3):
        a(f"v_alignbit_b32 {vr(v.Q+k)}, {vr(v.Q+k+1)}, {vr(v.Q+k)}, 16")
    a(f"v_lshrrev_b32 {vr(v.Q+3)}, 16, {vr(v.Q+3)}")
qshift()
a(f"v_add_u32 {vr(v.diagW)}, 2112, {vr(v.diagW)}")
a(f"s_mov_b32 s{sDelta}, 2112")
a("s_waitcnt lgkmcnt(1)")
for j in range(8):
    a(f"v_readfirstlane_b32 s{sP+1+j}, {vr(tR+j)}")
a(f"s_mov_b32 s{sP}, 0")
for j in range(8):
    a(f"s_add_u32 s{sP+1+j}, s{sP+1+j}, s{sP+j}")
a(f"s_mov_b32 s{sNT}, s{sP+8}")
a(f"s_mov_b64 {sp(sFIRST)}, 0")
a(f"s_mov_b64 {sp(sLAST2)}, 0")
for j in range(8):
    a(f"s_lshl_b64 {sp(sT0+16)}, 1, s{sP+j}")
    a(f"s_or_b64 {sp(sFIRST)}, {sp(sFIRST)}, {sp(sT0+16)}")
    a(f"s_add_u32 s{sT0+18}, s{sP+j+1}, 1")
    a(f"s_lshl_b64 {sp(sT0+16)}, 1, s{sT0+18}")
    a(f"s_or_b64 {sp(sLAST2)}, {sp(sLAST2)}, {sp(sT0+16)}")
a(f"s_lshl_b32 m0, s{sW}, 1")
a(f"s_movrels_b32 s{sT0+14}, s{sP}")
a(f"s_movrels_b32 s{sT0+15}, s{sP+1}")
a(f"v_lshlrev_b32 {vr(tB)}, 2, {vr(tLane)}")
a(f"s_mul_i32 s{sT0+16}, s{sW}, 400")
a(f"v_add_u32 {vr(tB)}, s{sT0+16}, {vr(tB)}")
for b in range(2):
    a(f"s_lshl_b32 s{sT0+14+b}, s{sT0+14+b}, 6")
    a(f"s_add_u32 s{sT0+14+b}, s{sT0+14+b}, {IDX}")
    for e in range(4):
        bal = sBal + 2 * (4*b + e)
        a(f"s_lshl_b32 s{sT0+16}, s{sT0+4*b+e}, 1")
        a(f"s_add_u32 s{sT0+16}, s{sT0+16}, s{sT0+14+b}")
        a(f"v_lshl_add_u32 {vr(tC)}, {vr(tP+4*b+e)}, 1, s{sT0+16}")
        a(f"v_add_u32 {vr(tD)}, {200*b + e}, {vr(tB)}")
        a(f"s_mov_b64 exec, {sp(bal)}")
        a(f"ds_write_b16 {vr(tC)}, {vr(tD)}")
        op = "ds_write_b16" if e % 2 == 0 else "ds_write_b16_d16_hi"
        a(f"{op} {vr(tC)}, {vr(MK + 2*b + (e>>1))} offset:3584")
        a(f"s_mov_b64 exec, -1")

def tr_frags(dst, slot0):
    for T in range(4):
        for f in range(2):
            for u in range(2):
                a(f"ds_read_b64_tr_b16 {vr(dst + 8*T + 4*f + 2*u, 2)}, {vr(aW + 2*f + u)} offset:{(slot0+T)*8192}")

a(f"s_waitcnt vmcnt({NOTHER}) lgkmcnt(0)")
a("s_barrier")
tr_frags(v.WE, 0)
tr_frags(v.H, 4)
a("s_waitcnt lgkmcnt(0)")
a("s_barrier")
ts(2)
for s in range(8):
    row0 = (128 if s < 4 else 384) + 32 * (s & 3)
    a(f"s_mov_b32 s{sT0+1}, {row0*256}")
    dma(v.tmp, sW1, f"s{sT0+1}", s, False)
a(f"s_waitcnt vmcnt(16)")
CB = v.Y1
for i in range(4):
    a(f"v_lshlrev_b32 {vr(CB+4*i)}, 16, {vr(B1T+2*i)}")
    a(f"v_and_b32 {vr(CB+4*i+1)}, 0xffff0000, {vr(B1T+2*i)}")
    a(f"v_lshlrev_b32 {vr(CB+4*i+2)}, 16, {vr(B1T+2*i+1)}")
    a(f"v_and_b32 {vr(CB+4*i+3)}, 0xffff0000, {vr(B1T+2*i+1)}")
a(f"v_lshlrev_b32 {vr(v.b2c)}, 16, {vr(v.b2c)}")
a(f"s_cmp_eq_u32 s{sW}, 0")
a(f"s_cselect_b32 s{sT0+2}, -1, 0")
a(f"v_and_b32 {vr(v.b2c)}, s{sT0+2}, {vr(v.b2c)}")
a(f"v_mov_b32 {vr(v.b2c+1)}, {vr(v.b2c)}")
Fr = lambda f: vr(v.D2 + 4*f, 4)
for T in range(4):
    D = vr(v.WAC + 16*T, 16)
    a(f"{MF32} {D}, {Fr(0)}, {vr(v.WE + 8*T, 4)}, 0")
    a(f"{MF32} {D}, {Fr(1)}, {vr(v.WE + 8*T + 4, 4)}, {D}")
    a(f"{MF32} {D}, {Fr(0)}, {vr(v.H + 8*T, 4)}, {D}")
    a(f"{MF32} {D}, {Fr(1)}, {vr(v.H + 8*T + 4, 4)}, {D}")
for ks in range(8):
    C = "0" if ks == 0 else vr(v.Y0, 16)
    a(f"{MF32} {vr(v.Y0,16)}, {vr(v.H + 4*ks, 4)}, {vr(v.WD + 4*ks, 4)}, {C}")
for i in range(64):
    a(f"v_mul_f32 {vr(v.WAC+i)}, s{sC}, {vr(v.WAC+i)}")
a("s_waitcnt vmcnt(0)")
a("s_barrier")
tr_frags(v.H, 0)
tr_frags(v.WE, 4)
IX = v.BR + 8
for t in range(5):
    a(f"ds_read_u16 {vr(IX+t)}, {vr(v.idxA)} offset:{64*t}")
a("s_waitcnt lgkmcnt(0)")
a("s_barrier")
ts(3)
for t in range(5):
    a(f"v_lshl_add_u32 {vr(IX+t)}, {vr(IX+t)}, 8, {vr(v.lane_off)}")
for t in range(5):
    dma(IX+t, sHist, "0", t, True)
for ks in range(8):
    a(f"{MF32} {vr(v.Y1,16)}, {vr(v.H + 4*ks, 4)}, {vr(v.WD + 4*ks, 4)}, {vr(v.Y1,16)}")
for T in range(4):
    if T == 2:
        for i in range(16):
            a(f"v_sub_f32 {vr(v.Y1+i)}, {vr(v.Y1+i)}, {vr(v.Y0+i)}")
        for i in range(16):
            a(f"v_mul_f32 {vr(v.Y1+i)}, s{sC}, {vr(v.Y1+i)}")
        for i in range(4):
            a(f"ds_write_b128 {vr(tBW)}, {vr(v.Y1+4*i,4)} offset:{32*i}")
        for TT in range(2):
            Db = v.H + 16*TT
            for i in range(16):
                a(f"v_mul_f32 {vr(Db+i)}, s{sC}, {vr(Db+i)}")
            for i in range(8):
                a(f"v_cvt_pk_bf16_f32 {vr(v.WD + 8*TT + i)}, {vr(Db+2*i)}, {vr(Db+2*i+1)}")
    D = vr(v.H + 16*(T & 1), 16)
    a(f"{MF32} {D}, {Fr(0)}, {vr(v.WE + 8*T, 4)}, 0")
    a(f"{MF32} {D}, {Fr(1)}, {vr(v.WE + 8*T + 4, 4)}, {D}")
for TT in range(2, 4):
    Db = v.H + 16*(TT & 1)
    for i in range(16):
        a(f"v_mul_f32 {vr(Db+i)}, s{sC}, {vr(Db+i)}")
    for i in range(8):
        a(f"v_cvt_pk_bf16_f32 {vr(v.WD + 8*TT + i)}, {vr(Db+2*i)}, {vr(Db+2*i+1)}")
a(f"s_mov_b32 s{sI}, 0")
a(f"s_mov_b32 s{sStep}, 0")
a(f"s_add_u32 s{sNT}, s{sNT}, 1")
for i in range(8):
    a(f"v_mov_b32 {vr(v.D2+i)}, 0")
for i in range(16):
    a(f"v_mov_b32 {vr(v.Y1+i)}, 0")
a("s_waitcnt vmcnt(8) lgkmcnt(0)")
a("s_barrier")
ts(4)

def prep_full(u):
    Ya = v.Y0 if u % 2 == 0 else v.Y1
    H = v.H
    for T in range(2):
        for f in range(2):
            a(f"ds_read_b128 {vr(H + 8*T + 4*f, 4)}, {vr(v.aDiag+f)} offset:{528*T}")
    for i in range(4):
        a(f"ds_read_b128 {vr(v.BR + 4*i, 4)}, {vr(v.biasA)} offset:{32*i}")
    a(f"ds_write_b16 {vr(v.diagW)}, {vr(v.Q)}")
    qshift()
    a(f"v_add_u32 {vr(v.biasA)}, 0x200, {vr(v.biasA)}")
    D0 = vr(Ya, 16); D1 = vr(H + 16, 16)
    a("s_waitcnt lgkmcnt(7)")
    a(f"{MF32} {D0}, {vr(H,4)}, {vr(v.WD,4)}, {vr(v.WAC,16)}")
    a(f"{MF32} {D0}, {vr(H+4,4)}, {vr(v.WD+4,4)}, {D0}")
    a("s_waitcnt lgkmcnt(5)")
    a(f"{MF32} {D1}, {vr(H+8,4)}, {vr(v.WD+8,4)}, {vr(v.WAC+16,16)}")
    a(f"{MF32} {D1}, {vr(H+12,4)}, {vr(v.WD+12,4)}, {D1}")
    for T in range(2, 4):
        for f in range(2):
            a(f"ds_read_b128 {vr(H + 8*(T-2) + 4*f, 4)}, {vr(v.aDiag+f)} offset:{528*T}")
    for f in range(2):
        a(f"v_add_u32 {vr(v.aDiag+f)}, s{sDelta}, {vr(v.aDiag+f)}")
    a(f"s_sub_u32 s{sDelta}, 0, s{sDelta}")
    a(f"v_add_u32 {vr(v.diagW)}, s{sDelta}, {vr(v.diagW)}")
    for i in range(8):
        a(f"v_cvt_pk_bf16_f32 {vr(v.WE + i)}, {vr(Ya+2*i)}, {vr(Ya+2*i+1)}")
    a("s_waitcnt lgkmcnt(2)")
    a(f"{MF32} {D0}, {vr(H,4)}, {vr(v.WD+16,4)}, {vr(v.WAC+32,16)}")
    a(f"{MF32} {D0}, {vr(H+4,4)}, {vr(v.WD+20,4)}, {D0}")
    for i in range(8):
        a(f"v_cvt_pk_bf16_f32 {vr(v.WE + 8 + i)}, {vr(H+16+2*i)}, {vr(H+16+2*i+1)}")
    a("s_waitcnt lgkmcnt(0)")
    a(f"{MF32} {D1}, {vr(H+8,4)}, {vr(v.WD+24,4)}, {vr(v.WAC+48,16)}")
    a(f"{MF32} {D1}, {vr(H+12,4)}, {vr(v.WD+28,4)}, {D1}")
    for i in range(8):
        a(f"v_cvt_pk_bf16_f32 {vr(v.WE + 16 + i)}, {vr(Ya+2*i)}, {vr(Ya+2*i+1)}")
    for i in range(8):
        a(f"v_cvt_pk_bf16_f32 {vr(v.WE + 24 + i)}, {vr(H+16+2*i)}, {vr(H+16+2*i+1)}")

def epilogue():
    D2 = v.D2; X = v.H + 16
    for dt in range(2):
        a(f"v_add_f32 {vr(X+2*dt)}, {vr(D2+4*dt)}, {vr(D2+4*dt+1)}")
        a(f"v_add_f32 {vr(X+2*dt+1)}, {vr(D2+4*dt+2)}, {vr(D2+4*dt+3)}")
    for dt in range(2):
        a(f"v_add_f32 {vr(X+2*dt)}, {vr(X+2*dt)}, {vr(X+2*dt+1)}")
    a(f"v_cndmask_b32 {vr(X)}, {vr(X)}, {vr(X+2)}, {sp(sSel)}")
    a(f"v_cvt_pk_bf16_f32 {vr(X)}, {vr(X)}, {vr(X)}")
    a(f"buffer_store_short {vr(X)}, {vr(v.outA)}, {srd(sOut)}, 0 offen")
    a(f"s_add_u32 s{sOut}, s{sOut}, 256")
    a(f"s_addc_u32 s{sOut+1}, s{sOut+1}, 0")
    for i in range(8):
        a(f"v_mov_b32 {vr(D2+i)}, 0")

def gemm2_reads(u):
    slot = (u - 2) & 7
    H = v.H
    par = (u - 1) & 1
    for du in range(2):
        for dt in range(2):
            a(f"ds_read_b64_tr_b16 {vr(H + 4*dt + 2*du, 2)}, {vr(v.aT + 2*du + dt)} offset:{slot*8192}")
    a(f"ds_read_b128 {vr(H+8,4)}, {vr(v.partR)} offset:{par*256}")

def gemm2_mfma():
    H = v.H
    for dt in range(2):
        a(f"{MF16} {vr(v.D2+4*dt,4)}, {vr(H+8,4)}, {vr(H+4*dt,4)}, {vr(v.D2+4*dt,4)}")

def body(u, do_g2=True):
    Ya = v.Y0 if u % 2 == 0 else v.Y1
    Yb = v.Y1 if u % 2 == 0 else v.Y0
    H = v.H
    slot = u
    a(f"s_bitcmp1_b64 {sp(sFIRST)}, s{sI}")
    a(f"s_cbranch_scc0 L_np{u}{'' if do_g2 else 'p'}")
    prep_full(u)
    a.label(f"L_np{u}{'' if do_g2 else 'p'}")
    for ks in range(8):
        a(f"ds_read_b128 {vr(H+4*ks,4)}, {vr(v.aH + (ks&3))} offset:{slot*8192 + 4096*(ks>>2)}")
    a(f"ds_read_u16 {vr(v.idx)}, {vr(v.idxA)} offset:{64*(u+5)}")
    a(f"ds_read_u16_d16_hi {vr(v.m0)}, {vr(v.maskA)} offset:{64*u}")
    a(f"ds_read_u16_d16_hi {vr(v.m1)}, {vr(v.maskA)} offset:{64*u+32}")
    def mf(ks):
        C = vr(v.BR,16) if ks == 0 else vr(Ya,16)
        a(f"{MF32} {vr(Ya,16)}, {vr(v.WE+4*ks,4)}, {vr(H+4*ks,4)}, {C}")
    def sig(lo, hi_, stage):
        for i in range(lo, hi_):
            if stage == 0: a(f"v_exp_f32 {vr(Yb+i)}, {vr(Yb+i)}")
            elif stage == 1: a(f"v_add_f32 {vr(Yb+i)}, 1.0, {vr(Yb+i)}")
            elif stage == 2: a(f"v_rcp_f32 {vr(Yb+i)}, {vr(Yb+i)}")
    def cvt(lo, hi_):
        for k in range(lo, hi_):
            a(f"v_cvt_pk_bf16_f32 {vr(Yb+k)}, {vr(Yb+2*k)}, {vr(Yb+2*k+1)}")
    sig(0, 8, 0)
    a("s_waitcnt lgkmcnt(10)")
    mf(0)
    sig(0, 8, 1)
    a("s_waitcnt lgkmcnt(9)")
    mf(1)
    sig(0, 4, 2)
    a("s_waitcnt lgkmcnt(8)")
    mf(2)
    sig(4, 8, 2)
    a("s_waitcnt lgkmcnt(7)")
    mf(3)
    sig(8, 12, 0)
    cvt(0, 4)
    a("s_waitcnt lgkmcnt(6)")
    mf(4)
    if do_g2:
        gemm2_reads(u)
    extra = 5 if do_g2 else 0
    sig(12, 16, 0)
    a(f"{MF16} {vr(v.D3,4)}, {vr(v.A3,4)}, {vr(Yb,4)}, {vr(v.b2c,4)}")
    a(f"s_waitcnt lgkmcnt({5+extra})")
    mf(5)
    sig(8, 16, 1)
    a(f"s_waitcnt lgkmcnt({4+extra})")
    mf(6)
    sig(8, 12, 2)
    a(f"s_waitcnt lgkmcnt({3+extra})")
    mf(7)
    sig(12, 16, 2)
    a(f"s_waitcnt lgkmcnt({extra})")
    a(f"v_lshl_add_u32 {vr(v.idx)}, {vr(v.idx)}, 8, {vr(v.lane_off)}")
    for k in range(4, 8):
        a(f"v_cvt_pk_bf16_f32 {vr(Yb+k)}, {vr(Yb+2*k)}, {vr(Yb+2*k+1)}")
    dma(v.idx, sHist, "0", (u+5) & 7, True)
    a(f"{MF16} {vr(v.D3,4)}, {vr(v.A3+4,4)}, {vr(Yb+4,4)}, {vr(v.D3,4)}")
    if do_g2:
        a("s_waitcnt lgkmcnt(0)")
        gemm2_mfma()
    a(f"v_mul_f32 {vr(v.D3)}, {vr(v.D3)}, {vr(v.m0)}")
    a(f"v_mul_f32 {vr(v.D3+1)}, {vr(v.D3+1)}, {vr(v.m1)}")
    a(f"v_cvt_pk_bf16_f32 {vr(v.D3)}, {vr(v.D3)}, {vr(v.D3+1)}")
    a("s_mov_b64 exec, 0xFFFF")
    a(f"ds_write_b32 {vr(v.partW)}, {vr(v.D3)} offset:{(u&1)*256}")
    a("s_mov_b64 exec, -1")
    if do_g2:
        a(f"s_bitcmp1_b64 {sp(sLAST2)}, s{sI}")
        a(f"s_cbranch_scc0 L_ne{u}")
        epilogue()
        a.label(f"L_ne{u}")
    if u == 7:
        a(f"v_add_u32 {vr(v.idxA)}, 512, {vr(v.idxA)}")
        a(f"v_add_u32 {vr(v.maskA)}, 512, {vr(v.maskA)}")
    a(f"s_add_u32 s{sI}, s{sI}, 1")
    a("s_waitcnt vmcnt(8) lgkmcnt(0)")
    a("s_barrier")


def tail(u):
    a.label(f"L_tail{u}")
    gemm2_reads(u)
    a("s_waitcnt lgkmcnt(0)")
    gemm2_mfma()
    epilogue()
    a("s_branch L_fin")

for u in range(2):
    body(u, do_g2=False)
a("s_branch L_b2")
for u in range(8):
    a.label(f"L_b{u}")
    body(u)
    a(f"s_cmp_eq_u32 s{sI}, s{sNT}")
    a(f"s_cbranch_scc1 L_tail{(u+1)&7}")
a("s_branch L_b0")
for u in range(8):
    tail(u)
a.label("L_fin")
if DEBUG_TS:
    ts(5)
    a(f"s_load_dwordx2 {sp(sTgt)}, s[0:1], 72")
    a("s_waitcnt vmcnt(0) lgkmcnt(0)")
    a(f"s_mov_b32 s{sTgt+2}, 0x100000")
    a(f"s_mov_b32 s{sTgt+3}, 0x00020000")
    a(f"s_lshl_b32 s{sT0+2}, s2, 2")
    a(f"s_add_u32 s{sT0+2}, s{sT0+2}, s{sW}")
    a(f"s_lshl_b32 s{sT0+2}, s{sT0+2}, 5")
    a(f"v_mov_b32 v0, s{sT0+2}")
    for k in range(6):
        a(f"v_mov_b32 v{4+k}, s{TSREG[k]}")
    a(f"v_mov_b32 v10, s{sNT}")
    a(f"s_getreg_b32 s{sT0+3}, hwreg(HW_REG_HW_ID)")
    a(f"s_getreg_b32 s{sT0+4}, hwreg(HW_REG_XCC_ID)")
    a(f"s_lshl_b32 s{sT0+4}, s{sT0+4}, 16")
    a(f"s_and_b32 s{sT0+3}, s{sT0+3}, 0xffff")
    a(f"s_or_b32 s{sT0+3}, s{sT0+3}, s{sT0+4}")
    a(f"v_mov_b32 v11, s{sT0+3}")
    a("s_mov_b64 exec, 1")
    a(f"buffer_store_dwordx4 v[4:7], v0, {srd(sTgt)}, 0 offen")
    a(f"buffer_store_dwordx4 v[8:11], v0, {srd(sTgt)}, 0 offen offset:16")
a("s_waitcnt vmcnt(0)")
a.label("L_end")
a("s_endpgm")

body_txt = a.finalize()
hdr = open("cdna_kernels/" + NAME + ".s.ref").read()
head = hdr[:hdr.index("; @launch")]
out = head + f"""; @launch grid=(512,1,1) block=(256,1,1) lds={LDS_BYTES}
.amdgcn_target "amdgcn-amd-amdhsa--gfx950"
.text
.globl {NAME}_kernel
.p2align 8
.type {NAME}_kernel,@function
{NAME}_kernel:
{body_txt}
.section .rodata,"a"
.p2align 6
.amdhsa_kernel {NAME}_kernel
  .amdhsa_next_free_vgpr {NVGPR}
  .amdhsa_next_free_sgpr 102
  .amdhsa_accum_offset 256
  .amdhsa_group_segment_fixed_size 0
  .amdhsa_kernarg_size 80
  .amdhsa_user_sgpr_count 2
  .amdhsa_user_sgpr_kernarg_segment_ptr 1
  .amdhsa_system_sgpr_workgroup_id_x 1
.end_amdhsa_kernel
"""
outp = [x for x in sys.argv[1:] if not x.startswith("--")]
path = outp[0] if outp else "cdna_kernels/" + NAME + ".s"
open(path, "w").write(out)
print("wrote", path, "lines", out.count("\n"), "nops", a.padded)
```

```python
import re

TRANS = ("v_exp_", "v_log_", "v_rcp_", "v_rsq_", "v_sqrt_", "v_sin_", "v_cos_")

def _regs(tok):
    tok = tok.strip()
    tok = re.sub(r"^-|^\||\|$", "", tok)
    m = re.fullmatch(r"([vs])\[(\d+):(\d+)\]", tok)
    if m:
        return [(m.group(1), i) for i in range(int(m.group(2)), int(m.group(3)) + 1)]
    m = re.fullmatch(r"([vs])(\d+)", tok)
    if m:
        return [(m.group(1), int(m.group(2)))]
    if tok == "vcc":
        return [("s", "vcc")]
    if tok in ("vcc_lo", "vcc_hi"):
        return [("s", "vcc")]
    if tok == "m0":
        return [("s", "m0")]
    if tok in ("exec", "exec_lo", "exec_hi"):
        return [("s", "exec")]
    return []

class Ins:
    def __init__(self, text):
        self.text = text
        t = text.split(";")[0].strip()
        self.label = None
        self.op = None
        self.reads = set(); self.writes = set()
        self.srcC = set(); self.srcAB = set()
        self.kind = "other"
        if not t:
            self.kind = "blank"; return
        if t.endswith(":"):
            self.kind = "label"; self.label = t[:-1]; return
        parts = t.split(None, 1)
        op = parts[0]; self.op = op
        rest = parts[1] if len(parts) > 1 else ""
        ops = [o.strip() for o in rest.split(",")] if rest else []
        if ops:
            last = ops[-1].split()
            self.mods = last[1:]
            ops[-1] = last[0] if last else ""
        else:
            self.mods = []
        self.ops = ops
        R = lambda i: set(_regs(ops[i])) if i < len(ops) else set()
        if op.startswith("v_mfma"):
            self.kind = "mfma"
            self.passes = 8 if "32x32x16" in op else 4
            self.writes = R(0); self.srcAB = R(1) | R(2); self.srcC = R(3)
            self.reads = self.srcAB | self.srcC
            self.dtok = ops[0]; self.ctok = ops[3]
        elif op.startswith("v_"):
            self.kind = "valu"
            self.trans = op.startswith(TRANS)
            if op.startswith("v_cmp"):
                if op.startswith("v_cmpx"):
                    self.writes = {("s", "exec")}
                self.writes |= R(0)
                for i in range(1, len(ops)): self.reads |= R(i)
            elif op.startswith("v_permlane") and "swap" in op:
                self.writes = R(0) | R(1); self.reads = R(0) | R(1)
            else:
                self.writes = R(0)
                for i in range(1, len(ops)): self.reads |= R(i)
                if op.startswith(("v_cndmask_b32",)) and len(ops) == 3:
                    self.reads.add(("s", "vcc"))
                if op.startswith(("v_fma_mix", "v_mac", "v_fmac", "v_writelane")) or "dst_unused:UNUSED_PRESERVE" in self.mods:
                    self.reads |= R(0)
            self.dpp = any(m.startswith(("quad_perm", "row_", "wave_", "bank_mask")) for m in self.mods)
            self.sdwa_dst = any(m.startswith("dst_sel:") and m != "dst_sel:DWORD" for m in self.mods) or op.startswith("v_fma_mix")
        elif op.startswith("ds_"):
            self.kind = "ds"
            if op.startswith(("ds_read", "ds_swizzle")):
                self.writes = R(0); self.reads = R(1)
                if "d16" in op: self.reads |= R(0)
            else:
                for i in range(len(ops)): self.reads |= R(i)
        elif op.startswith(("buffer_", "global_")):
            self.kind = "vmem"
            self.lds = "lds" in self.mods
            if op.startswith("buffer_load") and not self.lds:
                self.writes = R(0)
                for i in range(1, len(ops)): self.reads |= R(i)
                if "d16" in op: self.reads |= R(0)
            else:
                for i in range(len(ops)): self.reads |= R(i)
            if self.lds: self.reads.add(("s", "m0"))
            self.wide_store = op.startswith("buffer_store_dwordx4") or op.startswith("buffer_store_dwordx3")
        elif op.startswith("s_"):
            self.kind = "salu"
            if op == "s_nop":
                self.nop = int(ops[0], 0) + 1
            if op == "s_call_b64":
                self.target = ops[1]; self.writes = R(0)
            elif op == "s_setpc_b64":
                self.reads = R(0)
            elif op.startswith(("s_cbranch", "s_branch")):
                self.target = ops[0]
            elif op.startswith(("s_cmp", "s_bitcmp", "s_waitcnt", "s_barrier", "s_endpgm", "s_setprio", "s_nop")):
                for i in range(len(ops)): self.reads |= R(i)
            else:
                self.writes = R(0)
                for i in range(1, len(ops)): self.reads |= R(i)
                if op.startswith("s_movrel"): self.reads.add(("s", "m0"))
    def states(self):
        if self.kind in ("blank", "label"): return 0
        if self.op == "s_nop": return self.nop
        return 1

def _need(p, c):
    n = 0
    pv = {r for r in p.writes if r[0] == "v"}
    ps = {r for r in p.writes if r[0] == "s"}
    if p.kind == "mfma":
        full = 12 if p.passes == 8 else 8
        if c.kind == "mfma":
            if pv & c.srcAB: n = max(n, full)
            if pv & c.srcC:
                if not (c.ctok == p.dtok and c.passes == p.passes):
                    n = max(n, 10 if p.passes == 8 else 6)
            if pv & c.writes and not (c.dtok == p.dtok and c.ctok == p.dtok):
                n = max(n, 10 if p.passes == 8 else 6)
        elif c.kind in ("valu", "ds", "vmem"):
            if pv & (c.reads | c.writes): n = max(n, full)
        if c.kind == "valu" and (p.srcC & c.writes):
            n = max(n, 7 if p.passes == 8 else 3)
        if c.kind in ("ds", "vmem") and (p.srcC & c.writes):
            n = max(n, 7 if p.passes == 8 else 3)
    elif p.kind == "valu":
        if c.kind == "mfma" and pv & c.reads: n = max(n, 2)
        if c.kind == "valu":
            if p.trans and not c.trans and pv & c.reads: n = max(n, 1)
            if p.trans and c.trans and pv & c.reads: n = max(n, 1)
            if c.op.startswith(("v_readlane", "v_readfirstlane")) and pv & c.reads: n = max(n, 1)
            if c.dpp and pv & c.reads: n = max(n, 2)
            if c.op.startswith("v_permlane") and pv & c.reads: n = max(n, 2)
            if p.sdwa_dst and pv & (c.reads | c.writes): n = max(n, 1)
            if ps & c.reads:
                n = max(n, 4 if c.op.startswith(("v_readlane", "v_writelane")) else 2)
        if c.kind == "vmem" and ps & c.reads: n = max(n, 5)
        if c.kind == "salu" and ps & c.reads: n = max(n, 1)
    elif p.kind == "salu":
        if ("s", "m0") in ps:
            if c.kind == "vmem" and c.lds: n = max(n, 1)
            if c.kind == "salu" and c.op.startswith("s_movrel"): n = max(n, 1)
    elif p.kind == "vmem":
        if p.wide_store and c.kind == "valu" and ({r for r in p.reads if r[0] == "v"} & c.writes): n = max(n, 2)
    return n

def auto_lgkm(lines, init=None):
    out = []
    q = [set(x) for x in (init or [])]
    for l in lines:
        x = Ins(l)
        if x.kind in ("label", "blank"):
            out.append(l); continue
        if x.kind == "salu" and x.op == "s_waitcnt":
            m = re.search(r"lgkmcnt\((\d+)\)", l)
            if m:
                n = int(m.group(1))
                while len(q) > n: q.pop(0)
            out.append(l); continue
        touched = {r for r in (x.reads | x.writes) if r[0] == "v"}
        need = -1
        for i, d in enumerate(q):
            if d & touched: need = i
        if need >= 0:
            n = len(q) - 1 - need
            n = min(n, 15)
            out.append(f"s_waitcnt lgkmcnt({n})")
            while len(q) > n: q.pop(0)
        if x.kind == "ds":
            q.append(set(x.writes))
        out.append(l)
    return out, len(q)

class Asm:
    def __init__(self):
        self.lines = []
    def begin_auto(self):
        self._mark = len(self.lines)
    def end_auto(self, init=None):
        seg = self.lines[self._mark:]
        new, left = auto_lgkm(seg, init)
        self.lines[self._mark:] = new
        return left
    def __call__(self, s):
        for l in s.split("\n"):
            l = l.strip()
            if l: self.lines.append(l)
    def label(self, name): self.lines.append(name + ":")
    def finalize(self, maxlook=20):
        ins = [Ins(l) for l in self.lines]
        labels = {x.label: i for i, x in enumerate(ins) if x.kind == "label"}
        srcs = {}
        for i, x in enumerate(ins):
            if x.kind == "salu" and hasattr(x, "target"):
                srcs.setdefault(labels[x.target], []).append(i)
        rets = {}
        for i, x in enumerate(ins):
            if x.kind == "salu" and x.op == "s_call_b64":
                j = labels[x.target]
                while not (ins[j].kind == "salu" and ins[j].op == "s_setpc_b64"): j += 1
                rets.setdefault(i + 1, []).append(j)
        pad = [0] * len(ins)
        total = 0
        def required(ci):
            c = ins[ci]
            best = 0
            stack = [(ci, 0)]
            seen = {}
            while stack:
                i, dist = stack.pop()
                preds = []
                if i > 0:
                    pr = ins[i - 1]
                    if not (pr.kind == "salu" and pr.op in ("s_branch", "s_endpgm", "s_setpc_b64", "s_call_b64")):
                        preds.append(i - 1)
                preds += rets.get(i, [])
                if ins[i].kind == "label":
                    preds += srcs.get(i, [])
                for p in preds:
                    d = dist + (pad[i] if i != ci else 0) if p == i - 1 else dist
                    x = ins[p]
                    if x.kind not in ("label", "blank"):
                        need = _need(x, c)
                        if need > d: best = max(best, need - d)
                    nd = d + x.states()
                    if nd < maxlook and seen.get(p, 1 << 30) > nd:
                        seen[p] = nd
                        stack.append((p, nd))
            return best
        for i, c in enumerate(ins):
            if c.kind in ("label", "blank"): continue
            pad[i] = required(i)
            total += pad[i]
        out = []
        for i, c in enumerate(ins):
            k = pad[i]
            while k > 0:
                n = min(k, 16)
                out.append(f"s_nop {n-1}")
                k -= n
            out.append(c.text if c.kind == "label" else "  " + c.text)
        self.padded = total
        return "\n".join(out)
```

```python
import sys
from asmlib import Asm

NAME = "standalone__sequential_behavior_din__recsys"
DEBUG_TS = "--ts" in sys.argv
FL = lambda x: ("--" + x) in sys.argv
def OPT(name, default):
    for x in sys.argv:
        if x.startswith("--" + name + "="): return x.split("=", 1)[1]
    return default

MISC0 = 131072
IDX = 0
MASKL = 3584
PART = 7232
BIAS = 8000
DIAG = 12096
CNT = 16320
LDS_BYTES = 163840
assert CNT + 32 <= 16384

class V: pass
v = V()
def vr(a, n=1):
    return f"v{a}" if n == 1 else f"v[{a}:{a+n-1}]"
v.aH = 0; v.aT = 4; v.idxA = 8; v.idx = 9; v.lane_off = 10; v.maskA = 11
v.m0 = 12; v.m1 = 13; v.partW = 14; v.partR = 15; v.aDiag = 16; v.diagW = 18
v.biasA = 19; v.outA = 20; v.tmp = 21; v.b2c = 22; v.Q = 24; v.D3 = 28; v.D2 = 32
v.A3 = 40; v.BR = 48; v.Y = 64; v.X = 80; v.Y0 = 64; v.Y1 = 80; v.H = 96; v.WAC = 128; v.WD = 192; v.WE = 224
NVGPR = 256

sHist = 4; sW1 = 8; sOut = 12; sTgt = 16; sMask = 20; sB1 = 24; sW2 = 28; sB2 = 32
sEND = 34; sW = 36; sWoff = 37; sG = 38; sNT = 39; sFIRST = 40; sLAST = 42
sDelta = 44; sMB = 45; sSel = 46; sC = 48; sB2v = 49
sT0 = 50
sP = 70
sBal = 80
sRet = 94
sTgtC = 93
sTgtR = 92
sCv = 55
sFav = 38
CTR = 512

a = Asm()
TSREG = {0: 96, 1: 97, 2: 98, 3: 99, 4: 100, 5: 101}
def ts(k):
    if DEBUG_TS:
        a(f"s_memrealtime s[{sT0+18}:{sT0+19}]")
        a("s_waitcnt lgkmcnt(0)")
        a(f"s_mov_b32 s{TSREG[k]}, s{sT0+18}")
        if k == 4 or k == 5:
            a(f"s_memtime s[{sT0+18}:{sT0+19}]")
            a("s_waitcnt lgkmcnt(0)")
            if k == 4: a(f"s_mov_b32 s3, s{sT0+18}")
            else: a(f"s_sub_u32 s3, s{sT0+18}, s3")

PROF = FL("prof")
def pm(k):
    return [f"s_memtime s[{80+2*k}:{81+2*k}]"] if PROF else []
def pacc():
    if not PROF: return []
    return ["s_sub_u32 s91, s82, s80", "s_add_u32 s97, s97, s91", "s_sub_u32 s91, s84, s82", "s_add_u32 s98, s98, s91",
            "s_sub_u32 s91, s86, s84", "s_add_u32 s99, s99, s91"]
def srd(r): return f"s[{r}:{r+3}]"
def sp(r): return f"s[{r}:{r+1}]"

def dma_a(voff, srdreg, soff, slot, nt):
    f = " nt" if nt else ""
    return [f"s_add_u32 m0, s{sWoff}, {slot*8192}",
            f"buffer_load_dwordx4 {vr(voff)}, {srd(srdreg)}, {soff} offen{f} lds"]
def dma_b(voff, srdreg, soff, slot, nt):
    f = " nt" if nt else ""
    return [f"s_add_u32 m0, s{sWoff}, {slot*8192 + 4096 - 128}",
            f"buffer_load_dwordx4 {vr(voff)}, {srd(srdreg)}, {soff} offen offset:128{f} lds"]
INLOOP = False
def emit(lst):
    for x in [y for z in lst for y in z.split("\n")]:
        if INLOOP and FL("nodma") and x.startswith("buffer_load"): continue
        if INLOOP and FL("nosig") and x.startswith(("v_exp", "v_rcp", "v_add_f32")): continue
        if INLOOP and FL("nog1") and x.startswith("v_mfma_f32_32x32"): continue
        if x.startswith("; skip"): continue
        a(x)
def dma(voff, srdreg, soff, slot, nt):
    emit(dma_a(voff, srdreg, soff, slot, nt)); emit(dma_b(voff, srdreg, soff, slot, nt))

MF32 = "v_mfma_f32_32x32x16_bf16"
MF16 = "v_mfma_f32_16x16x32_bf16"
NT_HIST = not FL("nont")

a("s_cmp_ge_u32 s2, 256")
a("s_cbranch_scc1 L_end")
ts(0)
a(f"s_load_dwordx2 {sp(sMask)}, s[0:1], 16")
a(f"s_load_dwordx2 {sp(sW1)}, s[0:1], 24")
a(f"s_load_dwordx2 {sp(sTgt)}, s[0:1], 0")
a(f"s_load_dwordx2 {sp(sB1)}, s[0:1], 32")
a(f"s_load_dwordx2 {sp(sW2)}, s[0:1], 40")
a(f"s_load_dwordx2 {sp(sB2)}, s[0:1], 48")
a(f"s_load_dwordx2 {sp(sHist)}, s[0:1], 8")
a(f"s_load_dwordx2 {sp(sOut)}, s[0:1], 56")
tLane, tHi, tM, tQ, tN4, tA, tB, tC, tD, tE, tF, tG = [v.BR + i for i in range(12)]
a(f"v_lshrrev_b32 {vr(tA)}, 6, v0")
a(f"v_and_b32 {vr(tLane)}, 63, v0")
a(f"v_readfirstlane_b32 s{sT0}, {vr(tA)}")
a(f"v_and_b32 v0, 255, v0")
a(f"v_lshrrev_b32 {vr(tHi)}, 5, {vr(tLane)}")
a(f"v_and_b32 {vr(tM)}, 31, {vr(tLane)}")
a(f"v_lshrrev_b32 {vr(tQ)}, 4, {vr(tLane)}")
a(f"v_and_b32 {vr(tN4)}, 15, {vr(tLane)}")
a(f"s_and_b32 s{sW}, s{sT0}, 3")
a(f"s_lshr_b32 s{sG}, s{sT0}, 2")
a(f"s_lshl_b32 s2, s2, 1")
a(f"s_add_u32 s2, s2, s{sG}")
a(f"s_lshl_b32 s{sWoff}, s{sW}, 10")
a(f"s_lshl_b32 s{sT0}, s{sG}, 16")
a(f"s_add_u32 s{sWoff}, s{sWoff}, s{sT0}")
a(f"s_lshl_b32 s{sMB}, s{sG}, 14")
a(f"s_add_u32 s{sMB}, s{sMB}, {MISC0}")
a(f"s_mov_b32 s{sC}, 0xBFB8AA3B")
a(f"v_lshlrev_b32 {vr(tA)}, 3, {vr(tLane)}")
a(f"s_mul_i32 s{sT0}, s{sW}, 800")
a(f"v_add_u32 {vr(tA)}, s{sT0}, {vr(tA)}")
a(f"v_mov_b32 {vr(tB)}, 0x10000")
a(f"v_cmp_gt_u32 vcc, 50, {vr(tLane)}")
a(f"v_cndmask_b32 {vr(tA)}, {vr(tB)}, {vr(tA)}, vcc")
a(f"v_lshrrev_b32 {vr(tB)}, 3, {vr(tLane)}")
a(f"s_lshl_b32 s{sT0}, s{sW}, 3")
a(f"v_add_u32 {vr(tB)}, s{sT0}, {vr(tB)}")
a(f"v_and_b32 {vr(tD)}, 7, {vr(tLane)}")
a(f"v_and_b32 {vr(tC)}, 2, {vr(tB)}")
a(f"v_lshlrev_b32 {vr(tC)}, 1, {vr(tC)}")
a(f"v_xor_b32 {vr(tC)}, {vr(tC)}, {vr(tD)}")
a(f"v_lshlrev_b32 {vr(tC)}, 4, {vr(tC)}")
v.wv = v.Q
a(f"v_lshl_add_u32 {vr(v.wv)}, {vr(tB)}, 8, {vr(tC)}")
a(f"s_mul_i32 s{sT0}, s2, 3200")
a("s_waitcnt lgkmcnt(0)")
a(f"s_add_u32 s{sMask}, s{sMask}, s{sT0}")
a(f"s_addc_u32 s{sMask+1}, s{sMask+1}, 0")
a(f"s_mov_b32 s{sMask+2}, 3200")
a(f"s_mov_b32 s{sMask+3}, 0x00020000")
MK = v.Y1
a(f"buffer_load_dwordx2 {vr(MK,2)}, {vr(tA)}, {srd(sMask)}, 0 offen")
a(f"buffer_load_dwordx2 {vr(MK+2,2)}, {vr(tA)}, {srd(sMask)}, 0 offen offset:400")
a(f"s_load_dword s{sB2v}, {sp(sB2)}, 0")
a(f"s_mov_b32 s{sW1+2}, 131072")
a(f"s_mov_b32 s{sW1+3}, 0x00020000")
sWs = 79; sWb = 3
a(f"s_lshl_b32 s{sWb}, s{sG}, 16")
def wdma(s):
    return [[f"s_add_u32 s{sWs}, s{sWb}, {s*8192}"] + dma_a(v.wv, sW1, f"s{sWs}", s, False),
            dma_b(v.wv, sW1, f"s{sWs}", s, False)]
WD_ = [x for s_ in range(8) for x in wdma(s_)]
def cut(mark):
    blk = a.lines[mark:]
    del a.lines[mark:]
    return blk
def interleave(chunks, blk):
    n = len(chunks)
    pos = [int(len(blk) * (k + 0.3) / n) for k in range(n)] if n else []
    k = 0
    full = True
    for i, l in enumerate(blk):
        ok = full and not (l.startswith(("s_addc", "s_cselect", "s_cbranch", "s_movrels")) or l.endswith(":"))
        while k < n and i >= pos[k] and ok:
            for x in chunks[k]: a(x)
            k += 1
        a(l)
        if l.startswith("s_mov_b64 exec"): full = l.endswith("-1")
    while k < n:
        for x in chunks[k]: a(x)
        k += 1
NA = 16
a(f"s_lshl_b32 s{sT0}, s2, 11")
a(f"s_add_u32 s{sTgt}, s{sTgt}, s{sT0}")
a(f"s_addc_u32 s{sTgt+1}, s{sTgt+1}, 0")
a(f"s_mov_b32 s{sTgt+2}, 2048")
a(f"s_mov_b32 s{sTgt+3}, 0x00020000")
a(f"s_mov_b32 s{sB1+2}, 256")
a(f"s_mov_b32 s{sB1+3}, 0x00020000")
a(f"s_mov_b32 s{sW2+2}, 256")
a(f"s_mov_b32 s{sW2+3}, 0x00020000")
a(f"s_lshl_b32 s{sT0}, s{sW}, 10")
a(f"s_add_u32 s{sT0}, s{sT0}, s{sMB}")
a(f"s_add_u32 m0, s{sT0}, {BIAS}")
a(f"s_cmp_ge_u32 s{sW}, 2")
a("s_cbranch_scc1 L_stg_bw")
a(f"s_lshl_b32 s{sT0}, s{sW}, 2")
a(f"v_add_u32 {vr(tA)}, s{sT0}, {vr(tQ)}")
a(f"v_xor_b32 {vr(tC)}, {vr(tA)}, {vr(tN4)}")
a(f"v_lshlrev_b32 {vr(tC)}, 4, {vr(tC)}")
a(f"v_lshl_add_u32 {vr(tC)}, {vr(tA)}, 8, {vr(tC)}")
a(f"buffer_load_dwordx4 {vr(tC)}, {srd(sTgt)}, 0 offen lds")
a("s_branch L_stg_done")
a.label("L_stg_bw")
a(f"v_lshlrev_b32 {vr(tC)}, 4, {vr(tLane)}")
a(f"s_cmp_eq_u32 s{sW}, 2")
a("s_cbranch_scc0 L_stg_w2")
a(f"buffer_load_dwordx4 {vr(tC)}, {srd(sB1)}, 0 offen lds")
a("s_branch L_stg_done")
a.label("L_stg_w2")
a(f"buffer_load_dwordx4 {vr(tC)}, {srd(sW2)}, 0 offen lds")
a.label("L_stg_done")
NSTG = 1
a(f"s_mul_i32 s{sT0}, s2, {8*51200}")
a(f"s_add_u32 s{sHist}, s{sHist}, s{sT0}")
a(f"s_addc_u32 s{sHist+1}, s{sHist+1}, 0")
a(f"s_mov_b32 s{sHist+2}, {8*51200}")
a(f"s_mov_b32 s{sHist+3}, 0x00020000")
a(f"s_lshl_b32 s{sT0}, s2, 11")
a(f"s_add_u32 s{sOut}, s{sOut}, s{sT0}")
a(f"s_addc_u32 s{sOut+1}, s{sOut+1}, 0")
a(f"s_mov_b32 s{sOut+2}, 256")
a(f"s_mov_b32 s{sOut+3}, 0x00020000")

def addm(dst, const, src):
    a(f"s_add_u32 s{sT0+9}, s{sMB}, {const}")
    a(f"v_add_u32 {vr(dst)}, s{sT0+9}, {vr(src)}")

_m = len(a.lines)
F4 = v.H
a(f"v_lshlrev_b32 {vr(tA)}, 4, v0")
addm(tA, 0, tA)
a(f"v_mov_b32 {vr(tB)}, 0")
a(f"v_cmp_gt_u32 vcc, 224, v0")
for i in range(4, 8): a(f"v_mov_b32 {vr(F4+i)}, 0")
a(f"v_mov_b32 {vr(tC)}, -1")
a(f"v_cndmask_b32 {vr(F4)}, {vr(tB)}, {vr(tC)}, vcc")
for i in range(1, 4): a(f"v_mov_b32 {vr(F4+i)}, {vr(F4)}")
a(f"ds_write_b128 {vr(tA)}, {vr(F4,4)}")
a(f"v_add_u32 {vr(tC)}, 4096, {vr(tA)}")
a(f"s_add_u32 s{sT0}, s{sMB}, {BIAS-16}")
a(f"v_min_u32 {vr(tC)}, s{sT0}, {vr(tC)}")
a(f"ds_write_b128 {vr(tC)}, {vr(F4+4,4)}")
a(f"ds_write_b128 {vr(tA)}, {vr(F4+4,4)} offset:{DIAG}")
a(f"v_add_u32 {vr(tC)}, {DIAG+4096}, {vr(tA)}")
a(f"s_add_u32 s{sT0}, s{sMB}, {DIAG+4224-16}")
a(f"v_min_u32 {vr(tC)}, s{sT0}, {vr(tC)}")
a(f"ds_write_b128 {vr(tC)}, {vr(F4+4,4)}")

def phi(dst, r, t):
    a(f"v_lshrrev_b32 {vr(dst)}, 2, {vr(r)}")
    a(f"v_and_b32 {vr(dst)}, 4, {vr(dst)}")
    a(f"v_lshrrev_b32 {vr(t)}, 1, {vr(r)}")
    a(f"v_and_b32 {vr(t)}, 3, {vr(t)}")
    a(f"v_or_b32 {vr(dst)}, {vr(dst)}, {vr(t)}")
a(f"v_lshrrev_b32 {vr(tB)}, 3, {vr(tLane)}")
a(f"s_lshl_b32 s{sT0}, s{sW}, 3")
a(f"v_add_u32 {vr(tB)}, s{sT0}, {vr(tB)}")
phi(tC, tB, tD)
a(f"v_and_b32 {vr(tD)}, 7, {vr(tLane)}")
a(f"v_xor_b32 {vr(tC)}, {vr(tC)}, {vr(tD)}")
a(f"v_lshlrev_b32 {vr(v.lane_off)}, 4, {vr(tC)}")
a(f"v_lshlrev_b32 {vr(v.idxA)}, 1, {vr(tB)}")
addm(v.idxA, IDX, v.idxA)
sRB = sT0 + 8
a(f"s_lshl_b32 s{sRB}, s{sG}, 16")
phi(tA, tM, tB)
a(f"v_xor_b32 {vr(tA)}, {vr(tA)}, {vr(tHi)}")
a(f"v_lshlrev_b32 {vr(tB)}, 7, {vr(tM)}")
a(f"v_add_u32 {vr(tB)}, s{sRB}, {vr(tB)}")
for k in range(4):
    a(f"v_xor_b32 {vr(tC)}, {2*k}, {vr(tA)}")
    a(f"v_lshl_add_u32 {vr(v.aH+k)}, {vr(tC)}, 4, {vr(tB)}")
a(f"v_lshrrev_b32 {vr(tA)}, 2, {vr(tN4)}")
a(f"v_and_b32 {vr(tB)}, 1, {vr(tA)}")
a(f"v_lshlrev_b32 {vr(tB)}, 4, {vr(tB)}")
a(f"v_lshrrev_b32 {vr(tA)}, 1, {vr(tA)}")
a(f"v_add_u32 {vr(tB)}, {vr(tA)}, {vr(tB)}")
a(f"v_lshl_add_u32 {vr(tB)}, {vr(tQ)}, 2, {vr(tB)}")
a(f"v_and_b32 {vr(tC)}, 3, {vr(tN4)}")
a(f"v_lshrrev_b32 {vr(tD)}, 1, {vr(tC)}")
a(f"s_and_b32 s{sT0}, s{sW}, 1")
a(f"s_lshl_b32 s{sT0}, s{sT0}, 2")
a(f"v_or_b32 {vr(tD)}, s{sT0}, {vr(tD)}")
a(f"v_and_b32 {vr(tC)}, 1, {vr(tC)}")
a(f"v_lshlrev_b32 {vr(tC)}, 3, {vr(tC)}")
a(f"s_lshr_b32 s{sT0+1}, s{sW}, 1")
a(f"s_lshl_b32 s{sT0+1}, s{sT0+1}, 12")
a(f"v_add_u32 {vr(tC)}, s{sT0+1}, {vr(tC)}")
for u in range(2):
    a(f"v_add_u32 {vr(tE)}, {2*u}, {vr(tB)}")
    phi(tF, tE, tG)
    a(f"v_xor_b32 {vr(tF)}, {vr(tF)}, {vr(tD)}")
    a(f"v_lshl_add_u32 {vr(tE)}, {vr(tE)}, 7, {vr(tC)}")
    a(f"v_add_u32 {vr(tE)}, s{sRB}, {vr(tE)}")
    for dt in range(2):
        a(f"v_xor_b32 {vr(tG)}, {2*dt}, {vr(tF)}")
        a(f"v_lshl_add_u32 {vr(v.aT + 2*u + dt)}, {vr(tG)}, 4, {vr(tE)}")
aW = v.D3
a(f"v_and_b32 {vr(tE)}, 1, {vr(tQ)}")
a(f"v_lshl_or_b32 {vr(tD)}, {vr(tE)}, 1, {vr(tD)}")
a(f"v_lshrrev_b32 {vr(tA)}, 2, {vr(tN4)}")
a(f"v_lshl_add_u32 {vr(tB)}, {vr(tHi)}, 3, {vr(tA)}")
a(f"v_and_b32 {vr(tF)}, 2, {vr(tA)}")
a(f"v_lshlrev_b32 {vr(tF)}, 1, {vr(tF)}")
a(f"v_xor_b32 {vr(tF)}, {vr(tF)}, {vr(tD)}")
a(f"v_lshl_add_u32 {vr(tF)}, {vr(tF)}, 4, {vr(tC)}")
for f in range(2):
    for u in range(2):
        a(f"v_add_u32 {vr(tE)}, {16*f + 4*u}, {vr(tB)}")
        a(f"v_lshl_add_u32 {vr(aW + 2*f + u)}, {vr(tE)}, 7, {vr(tF)}")
a(f"s_lshl_b32 s{sT0}, s{sW}, 6")
a(f"v_lshlrev_b32 {vr(tA)}, 2, {vr(tN4)}")
a(f"v_add_u32 {vr(tA)}, s{sT0}, {vr(tA)}")
addm(v.partW, PART, tA)
a(f"v_and_b32 {vr(tA)}, 3, {vr(tN4)}")
a(f"v_lshlrev_b32 {vr(tA)}, 6, {vr(tA)}")
a(f"v_lshl_add_u32 {vr(tA)}, {vr(tQ)}, 4, {vr(tA)}")
addm(v.partR, PART, tA)
a(f"v_lshlrev_b32 {vr(tA)}, 1, {vr(tN4)}")
addm(v.maskA, MASKL, tA)
a(f"v_and_b32 {vr(tA)}, 0x13, {vr(tM)}")
a(f"v_lshrrev_b32 {vr(tB)}, 1, {vr(tM)}")
a(f"v_and_b32 {vr(tB)}, 4, {vr(tB)}")
a(f"v_or_b32 {vr(tA)}, {vr(tA)}, {vr(tB)}")
a(f"v_lshlrev_b32 {vr(tB)}, 1, {vr(tM)}")
a(f"v_and_b32 {vr(tB)}, 8, {vr(tB)}")
a(f"v_or_b32 {vr(tA)}, {vr(tA)}, {vr(tB)}")
a(f"v_lshrrev_b32 {vr(tB)}, 2, {vr(tM)}")
a(f"v_and_b32 {vr(tB)}, 1, {vr(tB)}")
a(f"v_xor_b32 {vr(tB)}, {vr(tB)}, {vr(tHi)}")
a(f"v_lshrrev_b32 {vr(tC)}, 4, {vr(tM)}")
a(f"v_lshl_or_b32 {vr(tC)}, {vr(tB)}, 1, {vr(tC)}")
a(f"v_lshlrev_b32 {vr(tD)}, 4, {vr(tA)}")
a(f"v_mov_b32 {vr(tE)}, 512")
for f in range(2):
    a(f"v_cmp_eq_u32 vcc, {f}, {vr(tC)}")
    a(f"v_cndmask_b32 {vr(tF)}, {vr(tE)}, {vr(tD)}, vcc")
    addm(v.aDiag + f, DIAG, tF)
a(f"v_and_b32 {vr(tD)}, 7, {vr(tA)}")
a(f"v_lshrrev_b32 {vr(tD)}, 1, {vr(tD)}")
a(f"v_lshl_add_u32 {vr(tD)}, {vr(tC)}, 2, {vr(tD)}")
a(f"v_and_b32 {vr(tE)}, 1, {vr(tM)}")
a(f"v_lshlrev_b32 {vr(tE)}, 4, {vr(tE)}")
a(f"v_mov_b32 {vr(tF)}, 0x3F80")
a(f"v_lshlrev_b32 {vr(tE)}, {vr(tE)}, {vr(tF)}")
a(f"v_mov_b32 {vr(tF)}, 0")
for f in range(2):
    for rho in range(4):
        a(f"v_cmp_eq_u32 vcc, {4*f+rho}, {vr(tD)}")
        a(f"v_cndmask_b32 {vr(v.D2 + 4*f + rho)}, {vr(tF)}, {vr(tE)}, vcc")
a(f"s_mul_i32 s{sT0}, s{sW}, 528")
a(f"v_and_b32 {vr(tA)}, 7, {vr(tM)}")
a(f"v_lshlrev_b32 {vr(tA)}, 1, {vr(tA)}")
a(f"v_lshl_add_u32 {vr(tA)}, {vr(tM)}, 4, {vr(tA)}")
a(f"v_add_u32 {vr(tA)}, s{sT0}, {vr(tA)}")
addm(v.diagW, DIAG, tA)
a(f"s_lshl_b32 s{sT0}, s{sW}, 7")
a(f"v_lshlrev_b32 {vr(tA)}, 4, {vr(tHi)}")
a(f"v_add_u32 {vr(tA)}, s{sT0}, {vr(tA)}")
addm(v.biasA, BIAS, tA)
tBW = v.tmp
a(f"v_lshrrev_b32 {vr(tA)}, 2, {vr(tM)}")
a(f"v_lshl_add_u32 {vr(tBW)}, {vr(tA)}, 9, {vr(v.biasA)}")
a(f"s_lshl_b32 s{sT0}, s{sW}, 6")
a(f"v_lshlrev_b32 {vr(tA)}, 1, {vr(tLane)}")
a(f"v_add_u32 {vr(tA)}, s{sT0}, {vr(tA)}")
a(f"v_mov_b32 {vr(tB)}, 0x40000000")
a(f"v_cmp_gt_u32 vcc, 32, {vr(tLane)}")
a(f"v_cndmask_b32 {vr(v.outA)}, {vr(tB)}, {vr(tA)}, vcc")
a(f"s_mov_b32 s{sSel}, 0xFFFF0000")
a(f"s_mov_b32 s{sSel+1}, 0xFFFF0000")
sgT = v.Y0
a(f"v_lshrrev_b32 {vr(tA)}, 2, {vr(tM)}")
a(f"v_lshlrev_b32 {vr(tB)}, 8, {vr(tA)}")
addm(sgT, BIAS, tB)
a(f"v_xor_b32 {vr(sgT+1)}, {vr(tA)}, {vr(tHi)}")
a(f"s_lshl_b32 s{sT0}, s{sW}, 2")
a(f"v_lshrrev_b32 {vr(tA)}, 3, {vr(tM)}")
a(f"v_add_u32 {vr(sgT+2)}, s{sT0}, {vr(tA)}")
a(f"v_and_b32 {vr(tA)}, 7, {vr(tM)}")
a(f"v_lshlrev_b32 {vr(tA)}, 1, {vr(tA)}")
addm(sgT+3, BIAS, tA)
a(f"s_lshl_b32 s{sT0}, s{sW}, 6")
a(f"v_lshlrev_b32 {vr(tA)}, 3, {vr(tHi)}")
a(f"v_add_u32 {vr(tA)}, s{sT0}, {vr(tA)}")
addm(sgT+4, BIAS + 2048, tA)
a(f"v_xor_b32 {vr(tA)}, {vr(tQ)}, {vr(tN4)}")
a(f"v_and_b32 {vr(tA)}, 1, {vr(tA)}")
a(f"v_lshlrev_b32 {vr(tA)}, 9, {vr(tA)}")
a(f"v_lshrrev_b32 {vr(tB)}, 1, {vr(tQ)}")
a(f"v_lshl_add_u32 {vr(tA)}, {vr(tB)}, 3, {vr(tA)}")
a(f"v_add_u32 {vr(tA)}, s{sT0}, {vr(tA)}")
addm(sgT+5, BIAS + 3072, tA)

interleave(WD_[:8], cut(_m))
a(f"s_waitcnt vmcnt({8 + NSTG})")
_m = len(a.lines)
tP = v.Y1 + 4
for b in range(2):
    for e in range(4):
        src = MK + 2*b + (e >> 1)
        lit = "0x7fff" if e % 2 == 0 else "0x7fff0000"
        bal = sBal + 2 * (4*b + e)
        a(f"v_and_b32 {vr(tA)}, {lit}, {vr(src)}")
        a(f"v_cmp_ne_u32 {sp(bal)}, 0, {vr(tA)}")
for b in range(2):
    for e in range(4):
        bal = sBal + 2 * (4*b + e)
        a(f"v_mbcnt_lo_u32_b32 {vr(tP + 4*b + e)}, s{bal}, 0")
        a(f"v_mbcnt_hi_u32_b32 {vr(tP + 4*b + e)}, s{bal+1}, {vr(tP + 4*b + e)}")
        a(f"s_bcnt1_i32_b64 s{sT0 + 4*b + e}, {sp(bal)}")
for b in range(2):
    t0 = sT0 + 4*b
    a(f"s_add_u32 s{sT0+10}, s{t0}, s{t0+1}")
    a(f"s_add_u32 s{sT0+11}, s{sT0+10}, s{t0+2}")
    a(f"s_add_u32 s{sT0+8+b}, s{sT0+11}, s{t0+3}")
    a(f"s_mov_b32 s{t0+1}, s{t0}")
    a(f"s_mov_b32 s{t0}, 0")
    a(f"s_mov_b32 s{t0+2}, s{sT0+10}")
    a(f"s_mov_b32 s{t0+3}, s{sT0+11}")
    a(f"s_add_u32 s{sT0+12+b}, s{sT0+8+b}, 31")
    a(f"s_lshr_b32 s{sT0+12+b}, s{sT0+12+b}, 5")
    a(f"s_max_u32 s{sT0+12+b}, s{sT0+12+b}, 1")
a(f"s_lshl_b32 s{sT0+14}, s{sW}, 3")
a(f"s_add_u32 s{sT0+14}, s{sT0+14}, {CNT}")
a(f"s_add_u32 s{sT0+14}, s{sT0+14}, s{sMB}")
a(f"v_mov_b32 {vr(tA)}, s{sT0+14}")
tF2 = tF
assert tF2 % 2 == 0
a(f"v_mov_b32 {vr(tF2)}, s{sT0+12}")
a(f"v_mov_b32 {vr(tF2+1)}, s{sT0+13}")
a(f"ds_write_b64 {vr(tA)}, {vr(tF2,2)}")
interleave(WD_[8:12], cut(_m))
a("s_waitcnt lgkmcnt(0)")
a("s_barrier")
ts(1)
_m = len(a.lines)
tR = v.H + 8
a(f"s_add_u32 s{sT0+14}, s{sMB}, {CNT}")
a(f"v_mov_b32 {vr(tA)}, s{sT0+14}")
a(f"ds_read_b128 {vr(tR,4)}, {vr(tA)}")
a(f"ds_read_b128 {vr(tR+4,4)}, {vr(tA)} offset:16")
a(f"s_mov_b32 s{sDelta}, 2112")
a("s_waitcnt lgkmcnt(0)")
for j in range(8):
    a(f"v_readfirstlane_b32 s{sP+1+j}, {vr(tR+j)}")
a(f"s_mov_b32 s{sP}, 0")
for j in range(8):
    a(f"s_add_u32 s{sP+1+j}, s{sP+1+j}, s{sP+j}")
a(f"s_mov_b32 s{sNT}, s{sP+8}")
a(f"s_mov_b64 {sp(sFIRST)}, 0")
a(f"s_mov_b64 {sp(sLAST)}, 0")
for j in range(8):
    if j > 0:
        a(f"s_lshl_b64 {sp(sT0+16)}, 1, s{sP+j}")
        a(f"s_or_b64 {sp(sFIRST)}, {sp(sFIRST)}, {sp(sT0+16)}")
    a(f"s_add_u32 s{sT0+18}, s{sP+j+1}, 1")
    a(f"s_lshl_b64 {sp(sT0+16)}, 1, s{sT0+18}")
    a(f"s_or_b64 {sp(sLAST)}, {sp(sLAST)}, {sp(sT0+16)}")
a(f"s_sub_u32 s{sT0+18}, s{sNT}, 1")
a(f"s_lshl_b64 {sp(sEND)}, 1, s{sT0+18}")
if FL("nofirst"): a(f"s_mov_b64 {sp(sFIRST)}, 0")
if FL("nolast"): a(f"s_mov_b64 {sp(sLAST)}, 0")
a(f"s_lshl_b32 m0, s{sW}, 1")
a(f"s_movrels_b32 s{sT0+14}, s{sP}")
a(f"s_movrels_b32 s{sT0+15}, s{sP+1}")
a(f"v_lshlrev_b32 {vr(tB)}, 2, {vr(tLane)}")
a(f"s_mul_i32 s{sT0+16}, s{sW}, 400")
a(f"v_add_u32 {vr(tB)}, s{sT0+16}, {vr(tB)}")
for b in range(2):
    a(f"s_lshl_b32 s{sT0+14+b}, s{sT0+14+b}, 6")
    a(f"s_add_u32 s{sT0+14+b}, s{sT0+14+b}, s{sMB}")
    for e in range(4):
        bal = sBal + 2 * (4*b + e)
        a(f"s_lshl_b32 s{sT0+16}, s{sT0+4*b+e}, 1")
        a(f"s_add_u32 s{sT0+16}, s{sT0+16}, s{sT0+14+b}")
        a(f"v_lshl_add_u32 {vr(tC)}, {vr(tP+4*b+e)}, 1, s{sT0+16}")
        a(f"v_add_u32 {vr(tD)}, {200*b + e}, {vr(tB)}")
        a(f"s_mov_b64 exec, {sp(bal)}")
        a(f"ds_write_b16 {vr(tC)}, {vr(tD)} offset:{IDX}")
        op = "ds_write_b16" if e % 2 == 0 else "ds_write_b16_d16_hi"
        a(f"{op} {vr(tC)}, {vr(MK + 2*b + (e>>1))} offset:{MASKL + 64}")
        a(f"s_mov_b64 exec, -1")

interleave(WD_[12:16], cut(_m))
a("s_waitcnt vmcnt(8) lgkmcnt(0)")
a("s_barrier")
ts(2)
B1R = v.WD
TQ = v.WD + 8
TFR = v.Y
AD = v.WD + 16
for b in range(8):
    a(f"v_xor_b32 {vr(AD+b)}, {b}, {vr(sgT+2)}")
    a(f"v_lshl_add_u32 {vr(AD+b)}, {vr(AD+b)}, 4, {vr(sgT+3)}")
for ks in range(8):
    a(f"v_xor_b32 {vr(AD+8+ks)}, {2*ks}, {vr(sgT+1)}")
    a(f"v_lshl_add_u32 {vr(AD+8+ks)}, {vr(AD+8+ks)}, 4, {vr(sgT)}")
for b in range(8):
    a(f"ds_read_u16_d16_hi {vr(TQ+b)}, {vr(AD+b)} offset:{256*b}")
for i in range(4):
    a(f"ds_read_b64 {vr(B1R+2*i,2)}, {vr(sgT+4)} offset:{16*i}")
for g in range(2):
    for hh in range(2):
        a(f"ds_read_b64 {vr(v.A3+4*g+2*hh,2)}, {vr(sgT+5)} offset:{32*g+16*hh}")
for ks in range(8):
    a(f"ds_read_b128 {vr(TFR+4*ks,4)}, {vr(AD+8+ks)}")
def tr_frags(dst, slot0, base):
    for T in range(4):
        for f in range(2):
            for u in range(2):
                a(f"ds_read_b64_tr_b16 {vr(dst + 8*T + 4*f + 2*u, 2)}, {vr(base + 2*f + u)} offset:{(slot0+T)*8192}")
aW1 = v.BR
for k in range(4): a(f"v_add_u32 {vr(aW1+k)}, 0x10000, {vr(aW+k)}")
tr_frags(v.H, 0, aW1)
a("s_waitcnt lgkmcnt(15)")
for b in range(8):
    a(f"v_mul_f32 {vr(TQ+b)}, s{sC}, {vr(TQ+b)}")
for k in range(4):
    a(f"v_cvt_pk_bf16_f32 {vr(v.Q+k)}, {vr(TQ+2*k)}, {vr(TQ+2*k+1)}")
def qshift():
    return [f"v_alignbit_b32 {vr(v.Q+k)}, {vr(v.Q+k+1)}, {vr(v.Q+k)}, 16" for k in range(3)] + \
           [f"v_lshrrev_b32 {vr(v.Q+3)}, 16, {vr(v.Q+3)}"]
a(f"ds_write_b16 {vr(v.diagW)}, {vr(v.Q)}")
emit(qshift())
a(f"v_add_u32 {vr(v.diagW)}, 2112, {vr(v.diagW)}")
tr_frags(v.WE, 0, aW)
IX = v.BR + 4
for t in range(5):
    a(f"ds_read_u16 {vr(IX+t)}, {vr(v.idxA)} offset:{64*t}")
a(f"ds_read_u16 {vr(v.idx)}, {vr(v.idxA)} offset:{64*5}")
a("s_waitcnt lgkmcnt(0)")
a("s_barrier")
for t in range(5):
    a(f"v_lshl_add_u32 {vr(IX+t)}, {vr(IX+t)}, 8, {vr(v.lane_off)}")
for t in range(4):
    dma(IX+t, sHist, "0", t, NT_HIST)
IX4 = v.m1
a(f"v_mov_b32 {vr(IX4)}, {vr(IX+4)}")
AC = v.BR
for ks in range(8):
    C = "0" if ks == 0 else vr(AC, 16)
    a(f"{MF32} {vr(AC,16)}, {vr(v.H + 4*ks, 4)}, {vr(TFR + 4*ks, 4)}, {C}")
Fr = lambda f: vr(v.D2 + 4*f, 4)
def wac(T):
    D = vr(v.WAC + 16*T, 16)
    a(f"{MF32} {D}, {Fr(0)}, {vr(v.WE + 8*T, 4)}, 0")
    a(f"{MF32} {D}, {Fr(1)}, {vr(v.WE + 8*T + 4, 4)}, {D}")
    a(f"{MF32} {D}, {Fr(0)}, {vr(v.H + 8*T, 4)}, {D}")
    a(f"{MF32} {D}, {Fr(1)}, {vr(v.H + 8*T + 4, 4)}, {D}")
wac(0)
B1F = v.WD + 16
for i in range(4):
    a(f"v_lshlrev_b32 {vr(B1F+4*i)}, 16, {vr(B1R+2*i)}")
    a(f"v_and_b32 {vr(B1F+4*i+1)}, 0xffff0000, {vr(B1R+2*i)}")
    a(f"v_lshlrev_b32 {vr(B1F+4*i+2)}, 16, {vr(B1R+2*i+1)}")
    a(f"v_and_b32 {vr(B1F+4*i+3)}, 0xffff0000, {vr(B1R+2*i+1)}")
wac(1)
for i in range(16):
    a(f"v_sub_f32 {vr(AC+i)}, {vr(B1F+i)}, {vr(AC+i)}")
wac(2)
for i in range(16):
    a(f"v_mul_f32 {vr(v.WAC+i)}, s{sC}, {vr(v.WAC+i)}")
wac(3)
for i in range(16):
    a(f"v_mul_f32 {vr(v.WAC+16+i)}, s{sC}, {vr(v.WAC+16+i)}")
a("s_waitcnt vmcnt(8)")
a("s_barrier")
ts(3)
for k in range(4): a(f"v_add_u32 {vr(v.H+k)}, 0x10000, {vr(aW+k)}")
tr_frags(v.WE, 4, aW)
tr_frags(v.WD, 4, v.H)
for i in range(16):
    a(f"v_mul_f32 {vr(v.WAC+32+i)}, s{sC}, {vr(v.WAC+32+i)}")
for i in range(16):
    a(f"v_mul_f32 {vr(v.WAC+48+i)}, s{sC}, {vr(v.WAC+48+i)}")
a("s_waitcnt lgkmcnt(0)")
a("s_barrier")
dma(IX4, sHist, "0", 4, NT_HIST)
for ks in range(8):
    a(f"{MF32} {vr(AC,16)}, {vr(v.WE + 4*ks, 4)}, {vr(TFR + 4*ks, 4)}, {vr(AC,16)}")
a(f"s_lshl_b32 s{sB2v}, s{sB2v}, 16")
a(f"s_cmp_eq_u32 s{sW}, 0")
a(f"s_cselect_b32 s{sB2v}, s{sB2v}, 0")
a(f"v_mov_b32 {vr(v.b2c)}, s{sB2v}")
a(f"v_mov_b32 {vr(v.b2c+1)}, s{sB2v}")

def prep_parts():
    H = v.H; X = v.X; Y = v.Y
    D0 = vr(Y, 16); D1 = vr(H + 16, 16)
    p = {}
    p["rd01"] = [f"ds_read_b128 {vr(X + 8*T + 4*f, 4)}, {vr(v.aDiag+f)} offset:{528*T}" for T in range(2) for f in range(2)]
    p["rb"] = [f"ds_read_b128 {vr(v.BR + 4*i, 4)}, {vr(v.biasA)} offset:{32*i}" for i in range(4)]
    p["qw"] = [f"ds_write_b16 {vr(v.diagW)}, {vr(v.Q)}"] + qshift() + [f"v_add_u32 {vr(v.biasA)}, 0x200, {vr(v.biasA)}"]
    p["P0"] = [f"{MF32} {D0}, {vr(X,4)}, {vr(v.WD,4)}, {vr(v.WAC,16)}", f"{MF32} {D0}, {vr(X+4,4)}, {vr(v.WD+4,4)}, {D0}"]
    p["P1"] = [f"{MF32} {D1}, {vr(X+8,4)}, {vr(v.WD+8,4)}, {vr(v.WAC+16,16)}", f"{MF32} {D1}, {vr(X+12,4)}, {vr(v.WD+12,4)}, {D1}"]
    p["rd23"] = [f"ds_read_b128 {vr(X + 8*(T-2) + 4*f, 4)}, {vr(v.aDiag+f)} offset:{528*T}" for T in range(2, 4) for f in range(2)]
    p["ptr"] = [f"v_add_u32 {vr(v.aDiag+f)}, s{sDelta}, {vr(v.aDiag+f)}" for f in range(2)] + \
               [f"s_sub_u32 s{sDelta}, 0, s{sDelta}", f"v_add_u32 {vr(v.diagW)}, s{sDelta}, {vr(v.diagW)}"]
    p["c0"] = [f"v_cvt_pk_bf16_f32 {vr(v.WE + i)}, {vr(Y+2*i)}, {vr(Y+2*i+1)}" for i in range(8)]
    p["P2"] = [f"{MF32} {D0}, {vr(X,4)}, {vr(v.WD+16,4)}, {vr(v.WAC+32,16)}", f"{MF32} {D0}, {vr(X+4,4)}, {vr(v.WD+20,4)}, {D0}"]
    p["c1"] = [f"v_cvt_pk_bf16_f32 {vr(v.WE + 8 + i)}, {vr(H+16+2*i)}, {vr(H+16+2*i+1)}" for i in range(8)]
    p["P3"] = [f"{MF32} {D1}, {vr(X+8,4)}, {vr(v.WD+24,4)}, {vr(v.WAC+48,16)}", f"{MF32} {D1}, {vr(X+12,4)}, {vr(v.WD+28,4)}, {D1}"]
    p["c2"] = [f"v_cvt_pk_bf16_f32 {vr(v.WE + 16 + i)}, {vr(Y+2*i)}, {vr(Y+2*i+1)}" for i in range(8)]
    p["c3"] = [f"v_cvt_pk_bf16_f32 {vr(v.WE + 24 + i)}, {vr(H+16+2*i)}, {vr(H+16+2*i+1)}" for i in range(8)]
    return p

a.begin_auto()
p = prep_parts()
emit(p["rd01"])
emit(p["P0"]); emit(p["P1"]); emit(p["rd23"])
for i in range(16):
    a(f"v_mul_f32 {vr(AC+i)}, s{sC}, {vr(AC+i)}")
for i in range(4):
    a(f"ds_write_b128 {vr(tBW)}, {vr(AC+4*i,4)} offset:{32*i}")
emit(p["qw"][:-1])
for k in ("ptr", "c0", "P2", "c1", "P3"): emit(p[k])
a("s_waitcnt lgkmcnt(0)")
emit(p["rb"]); emit(p["qw"][-1:])
for k in ("c2", "c3"): emit(p[k])
a.end_auto()
for i in range(16): a(f"v_mov_b32 {vr(v.Y+i)}, 0")
for i in range(8): a(f"v_mov_b32 {vr(v.D2+i)}, 0")
for i in range(4): a(f"v_mov_b32 {vr(v.D3+i)}, 0")
a(f"v_mov_b32 {vr(v.m0)}, 0")
a(f"v_mov_b32 {vr(v.m1)}, 0")
a("s_waitcnt vmcnt(8) lgkmcnt(0)")
a("s_barrier")
ts(4)
if PROF:
    for r in (97, 98, 99): a(f"s_mov_b32 s{r}, 0")
if FL("ilog"):
    a("s_memtime s[80:81]"); a("s_waitcnt lgkmcnt(0)"); a("s_mov_b32 s82, s80"); a("s_mov_b32 s84, 0")
    a(f"s_mov_b32 s86, s{sFIRST}"); a(f"s_mov_b32 s87, s{sLAST}")
    for r in range(56, 68): a(f"s_mov_b32 s{r}, 0")
a(f"s_mov_b32 s{sTgtR}, 0")

def sig_stream():
    Y = v.Y
    e = [f"v_exp_f32 {vr(Y+i)}, {vr(Y+i)}" for i in range(16)]
    d = [f"v_add_f32 {vr(Y+i)}, 1.0, {vr(Y+i)}" for i in range(16)]
    r = [f"v_rcp_f32 {vr(Y+i)}, {vr(Y+i)}" for i in range(16)]
    c = [f"v_cvt_pk_bf16_f32 {vr(Y+k)}, {vr(Y+2*k)}, {vr(Y+2*k+1)}" for k in range(8)]
    return e + d + r[:8] + c[:4] + r[8:] + c[4:]

def score_mfma():
    Y = v.Y
    S1 = f"{MF16} {vr(v.D3,4)}, {vr(v.A3,4)}, {vr(Y,4)}, {vr(v.b2c,4)}"
    S2 = f"{MF16} {vr(v.D3,4)}, {vr(v.A3+4,4)}, {vr(Y+4,4)}, {vr(v.D3,4)}"
    if FL("noS"): S1 = S2 = "; skip"
    return [S1, S2]

def fin(par_off, addr=None):
    return [f"v_mul_f32 {vr(v.D3)}, {vr(v.D3)}, {vr(v.m0)}",
            f"v_mul_f32 {vr(v.D3+1)}, {vr(v.D3+1)}, {vr(v.m1)}",
            f"v_cvt_pk_bf16_f32 {vr(v.D3)}, {vr(v.D3)}, {vr(v.D3+1)}",
            f"ds_write_b32 {vr(v.partW if addr is None else addr)}, {vr(v.D3)} offset:{par_off}"]

def epilogue():
    D2 = v.D2; T = v.H
    for dt in range(2):
        a(f"v_add_f32 {vr(T+2*dt)}, {vr(D2+4*dt)}, {vr(D2+4*dt+1)}")
        a(f"v_add_f32 {vr(T+2*dt+1)}, {vr(D2+4*dt+2)}, {vr(D2+4*dt+3)}")
    for dt in range(2):
        a(f"v_add_f32 {vr(T+2*dt)}, {vr(T+2*dt)}, {vr(T+2*dt+1)}")
    for i in range(8):
        a(f"v_mov_b32 {vr(D2+i)}, 0")
    a(f"v_cndmask_b32 {vr(T)}, {vr(T)}, {vr(T+2)}, {sp(sSel)}")
    a(f"v_cvt_pk_bf16_f32 {vr(T)}, {vr(T)}, {vr(T)}")
    a(f"buffer_store_short {vr(T)}, {vr(v.outA)}, {srd(sOut)}, 0 offen")
    a(f"s_add_u32 s{sOut}, s{sOut}, 256")
    a(f"s_addc_u32 s{sOut+1}, s{sOut+1}, 0")

def pieces(u, grp):
    H = v.H; X = v.X; Y = v.Y
    c = {}
    c["Rh"] = [f"ds_read_b128 {vr(H+4*ks,4)}, {vr(v.aH + (ks&3))} offset:{u*8192 + 4096*(ks>>2)}" for ks in range(8)]
    c["Ri"] = f"ds_read_u16 {vr(v.idx)}, {vr(v.idxA)} offset:{64*(u+6)}"
    mo = 64 * (u + 1)
    c["Rm"] = [f"ds_read_u16_d16_hi {vr(v.m0)}, {vr(v.maskA)} offset:{mo}",
               f"ds_read_u16_d16_hi {vr(v.m1)}, {vr(v.maskA)} offset:{mo+32}"]
    c["fin"] = fin(((u - 1) & 1) * 256)
    c["G"] = [f"{MF32} {vr(Y,16)}, {vr(v.WE+4*ks,4)}, {vr(H+4*ks,4)}, {vr(v.BR,16) if ks == 0 else vr(Y,16)}" for ks in range(8)]
    c["ix"] = f"v_lshl_add_u32 {vr(v.tmp)}, {vr(v.idx)}, 8, {vr(v.lane_off)}"
    c["da"] = dma_a(v.tmp, sHist, "0", (u+5) & 7, NT_HIST)
    c["db"] = dma_b(v.tmp, sHist, "0", (u+5) & 7, NT_HIST)
    slot = (u - 2) & 7
    c["Rt"] = [f"ds_read_b64_tr_b16 {vr(X + 4*dt + 2*du, 2)}, {vr(v.aT + 2*du + dt)} offset:{slot*8192}" for du in range(2) for dt in range(2)]
    c["Rp"] = f"ds_read_b128 {vr(X+8,4)}, {vr(v.partR)} offset:{(u&1)*256}"
    c["G2"] = [f"{MF16} {vr(v.D2+4*dt,4)}, {vr(X+8,4)}, {vr(X+4*dt,4)}, {vr(v.D2+4*dt,4)}" for dt in range(2)]
    c["S"] = score_mfma()
    GAP = int(OPT("gap", "-1"))
    if GAP >= 0:
        c["G"] = [x + f"\ns_nop {GAP}" for x in c["G"]]
    N = "; skip"
    if FL("nog2"): c["Rt"] = [N]*4; c["Rp"] = N; c["G2"] = [N]*2
    if FL("nofin"): c["fin"] = [N]*4
    if FL("noH"): c["Rh"] = [N]*8
    return c

PRIO = not FL("noprio")
def prio(n): return [f"s_setprio {n}"] if PRIO else []
def arrive():
    return ["s_mov_b64 exec, 1", f"ds_inc_u32 {vr(v.partR)}, {vr(v.partR)} offset:{CTR}", "s_mov_b64 exec, -1"]
def poll_rd(): return [f"ds_read_b32 {vr(v.tmp)}, {vr(v.partR)} offset:{CTR}"]
def poll_chk(target):
    return ["s_waitcnt lgkmcnt(0)", f"v_readfirstlane_b32 s{sCv}, {vr(v.tmp)}", f"s_cmp_ge_u32 s{sCv}, s{sTgtC}",
            f"s_cbranch_scc0 {target}"]
def spin(label, back):
    a.label(label)
    emit(poll_rd() + ["s_waitcnt lgkmcnt(0)", f"v_readfirstlane_b32 s{sCv}, {vr(v.tmp)}", f"s_cmp_ge_u32 s{sCv}, s{sTgtC}",
         f"s_cbranch_scc0 {label}"])
    if back: a(f"s_branch {back}")
HPRE = FL("hpre")
def with_sync(st, u, first, pr):
    st = list(st)
    RAISE = int(OPT("raise", "24"))
    if not HPRE:
        RD = len(st) - int(OPT("rdback", "10")); CHK = len(st); Rh = []
    else:
        Rh = pieces((u + 1) & 7, 0)["Rh"]
        RD = int(OPT("rdpos", "16")); CHK = int(OPT("chk", "32"))
        if first: RD, CHK = len(st) - 30, len(st) - 8
    pre, post = st[:CHK], st[CHK:]
    pre = pre[:RD] + poll_rd() + pre[RD:]
    if RAISE >= 0: pre = pre[:RAISE] + prio(pr[2]) + pre[RAISE:]
    if first:
        post = post + Rh
    else:
        out = []; q = list(Rh)
        for x in post:
            out.append(x)
            if q and x.startswith("v_rcp"): out.append(q.pop(0))
        post = out + q
    return pre, post

def m_phase(u):
    c = pieces(u, 0); G, Rh, Rt, S, Z = c["G"], c["Rh"], c["Rt"], c["S"], c["G2"]
    da, db, fin_ = c["da"], c["db"], c["fin"]
    tg = [f"s_add_u32 s{sTgtR}, s{sTgtR}, 4", f"s_bitcmp1_b32 s{sEND}, {u}", f"s_cselect_b32 s{sTgtC}, -1, s{sTgtR}"]
    s = Rh[:4] + [S[0]] + Rh[4:6] + [S[1]] + Rh[6:]
    ORD = OPT("mord", "a")
    if ORD == "a":
        s += [c["ix"], da[0], c["Rp"], da[1], G[0]] + fin_ + [G[1], db[0], Rt[0], db[1], Rt[2], G[2], Rt[1], Rt[3], c["Ri"], G[3]]
        s += c["Rm"] + tg + [G[4], G[5], G[6], G[7], Z[0], Z[1]]
    elif ORD == "b":
        s += [c["Rp"], Rt[0], G[0]] + fin_ + [G[1], c["ix"], da[0], Rt[2], da[1], G[2], db[0], Rt[1], db[1], Rt[3], G[3]]
        s += c["Rm"] + [c["Ri"], G[4]] + tg + [G[5], G[6], G[7], Z[0], Z[1]]
    elif ORD == "c":
        s += [c["ix"], da[0], c["Rp"], da[1], db[0], Rt[0], db[1], G[0]] + fin_ + [G[1], Rt[2], Rt[1], Rt[3], G[2], c["Ri"]] + c["Rm"] + [G[3]]
        s += tg + [G[4], G[5], G[6], G[7], Z[0], Z[1]]
    return s

def v_prep(vp):
    H = v.H; X = v.X; Y = v.Y; BR = v.BR
    D0 = vr(H, 16); D1 = vr(H + 16, 16)
    e = [f"v_exp_f32 {vr(Y+i)}, {vr(Y+i)}" for i in range(16)]
    d = [f"v_add_f32 {vr(Y+i)}, 1.0, {vr(Y+i)}" for i in range(16)]
    r = [f"v_rcp_f32 {vr(Y+i)}, {vr(Y+i)}" for i in range(16)]
    c = [f"v_cvt_pk_bf16_f32 {vr(Y+k)}, {vr(Y+2*k)}, {vr(Y+2*k+1)}" for k in range(8)]
    fr = lambda T, f: (X if T < 2 else BR) + 8 * (T & 1) + 4 * f
    rd = [f"ds_read_b128 {vr(fr(T, f), 4)}, {vr(v.aDiag+f)} offset:{528*T}" for T in range(4) for f in range(2)]
    def P(T):
        D = D0 if T % 2 == 0 else D1
        m = [f"{MF32} {D}, {vr(fr(T,0),4)}, {vr(v.WD+8*T,4)}, {vr(v.WAC+16*T,16)}",
             f"{MF32} {D}, {vr(fr(T,1),4)}, {vr(v.WD+8*T+4,4)}, {D}"]
        if FL("pprio"): m = [f"s_setprio 3\n{x}\ns_setprio {vp}" for x in m]
        return m
    def cv(T):
        D = H if T % 2 == 0 else H + 16
        return [f"v_cvt_pk_bf16_f32 {vr(v.WE + 8*T + i)}, {vr(D+2*i)}, {vr(D+2*i+1)}" for i in range(8)]
    p = prep_parts()
    P0, P1, P2, P3 = P(0), P(1), P(2), P(3)
    s = e[0:8] + ["s_waitcnt lgkmcnt(4)"]
    s += [P0[0]] + e[8:11] + [P0[1]] + e[11:14] + [P1[0]] + e[14:16] + d[0:2] + [P1[1]] + d[2:16]
    s += cv(0) + cv(1) + r[:8] + c[:4]
    s += ["s_waitcnt lgkmcnt(0)", P2[0]] + r[8:11] + [P2[1]] + r[11:14] + [P3[0]] + r[14:16] + [P3[1]]
    s += p["rb"] + c[4:] + p["qw"][1:] + p["ptr"] + cv(2) + cv(3)
    return s

def diag_reads():
    X = v.X; BR = v.BR
    fr = lambda T, f: (X if T < 2 else BR) + 8 * (T & 1) + 4 * f
    rd = [f"ds_read_b128 {vr(fr(T, f), 4)}, {vr(v.aDiag+f)} offset:{528*T}" for T in range(4) for f in range(2)]
    return rd[:4], rd[4:], f"ds_write_b16 {vr(v.diagW)}, {vr(v.Q)}"

INLOOP = True
def ilog(u):
    if PROF:
        emit(pm(3)); a("s_waitcnt lgkmcnt(0)"); emit(pacc())
    if FL("ilog"):
        a("s_memtime s[80:81]"); a("s_waitcnt lgkmcnt(0)")
        a("s_sub_u32 s83, s80, s82"); a("s_mov_b32 s82, s80")
        a("s_min_u32 m0, s84, 11")
        if u % 2 == 0:
            a("s_movreld_b32 s56, s83")
        else:
            a("s_movrels_b32 s85, s56"); a("s_lshl_b32 s83, s83, 16"); a("s_or_b32 s85, s85, s83")
            a("s_movreld_b32 s56, s85"); a("s_add_u32 s84, s84, 1")

def vsync(st, pr):
    st = list(st)
    RAISE = int(OPT("raise", "24"))
    k = len(st) - int(OPT("rdback", "10"))
    st = st[:k] + poll_rd() + st[k:]
    if RAISE >= 0: st = st[:RAISE] + prio(pr[2]) + st[RAISE:]
    return st

def loop(L, pr):
    VMW = "s_waitcnt lgkmcnt(0)" if FL("novm") else "s_waitcnt vmcnt(8)"
    emit(prio(pr[0]))
    for u in range(8):
        a.label(f"{L}b{u}")
        emit(pm(0))
        a.begin_auto()
        emit(m_phase(u))
        a.end_auto()
        a(f"s_bitcmp1_b32 s{sFIRST}, {u+1}")
        a(f"s_cbranch_scc1 {L}first{u}")
        a(f"s_bitcmp1_b32 s{sLAST}, {u}")
        a(VMW)
        emit(arrive())
        a(f"s_cbranch_scc1 {L}epi{u}")
        a.label(f"{L}done{u}")
        emit(pm(1))
        emit(prio(pr[1]))
        emit(vsync(sig_stream(), pr))
        a.label(f"{L}vj{u}")
        emit(pm(2))
        if u == 7:
            a(f"v_add_u32 {vr(v.idxA)}, 512, {vr(v.idxA)}")
            a(f"v_add_u32 {vr(v.maskA)}, 512, {vr(v.maskA)}")
            a(f"s_lshr_b64 {sp(sFIRST)}, {sp(sFIRST)}, 8")
            a(f"s_lshr_b64 {sp(sLAST)}, {sp(sLAST)}, 8")
            a(f"s_lshr_b64 {sp(sEND)}, {sp(sEND)}, 8")
        a("s_waitcnt lgkmcnt(0)")
        a(f"v_readfirstlane_b32 s{sCv}, {vr(v.tmp)}")
        emit(prio(pr[0]) or ["s_nop 0"])
        a(f"s_cmp_ge_u32 s{sCv}, s{sTgtC}")
        a(f"s_cbranch_scc0 {L}slow{u}")
        ilog(u)
        if u == 7: a(f"s_branch {L}b0")
    for u in range(8):
        a.label(f"{L}first{u}")
        r01, r23, qw = diag_reads()
        emit(r01 + [qw])
        a(f"s_bitcmp1_b32 s{sLAST}, {u}")
        a(VMW)
        emit(arrive())
        emit(r23)
        a(f"s_cbranch_scc1 {L}fepi{u}")
        a.label(f"{L}fdone{u}")
        emit(prio(pr[1]))
        a.begin_auto()
        emit(["s_waitcnt lgkmcnt(6)" if False else "; skip"] + vsync(v_prep(pr[1]), pr))
        a.end_auto()
        a(f"s_branch {L}vj{u}")
    for u in range(8):
        a.label(f"{L}epi{u}")
        epilogue()
        a(f"s_branch {L}done{u}")
        a.label(f"{L}fepi{u}")
        epilogue()
        a(f"s_branch {L}fdone{u}")
    for u in range(8):
        a.label(f"{L}slow{u}")
        a(f"s_cmp_eq_u32 s{sTgtC}, -1")
        a(f"s_cbranch_scc1 {L}stub{u}")
        a.label(f"{L}spin{u}")
        emit(poll_rd() + ["s_waitcnt lgkmcnt(0)", f"v_readfirstlane_b32 s{sCv}, {vr(v.tmp)}",
             f"s_cmp_ge_u32 s{sCv}, s{sTgtC}", f"s_cbranch_scc0 {L}spin{u}"])
        a(f"s_branch {L}b{(u+1)&7}")
    for u in range(8):
        a.label(f"{L}stub{u}")
        a(f"s_mov_b32 s{sSb}, {((u-1)&7)*8192}")
        a(f"s_mov_b32 s{sSc}, {u*8192}")
        a(f"s_mov_b32 s{sPb}, {((u+1)&1)*256}")
        a(f"s_mov_b32 s{sPc}, {(u&1)*256}")
        a(f"s_lshr_b64 {sp(sLAST)}, {sp(sLAST)}, {u+1 if u < 7 else 0}") if u < 7 else None
        a(f"s_branch L_tail")
sSb, sSc, sMo, sPb, sPc = [sT0 + i for i in range(5)]
PA = [int(x) for x in OPT("pa", "302")]
PB = [int(x) for x in OPT("pb", "302")]
TWO = PA != PB
if TWO:
    a(f"s_cmp_eq_u32 s{sFav}, 1")
    a("s_cbranch_scc1 LA_entry")
    loop("LB_", PB)
    a.label("LA_entry")
    loop("LA_", PA)
else:
    loop("L_", PA)
INLOOP = False

def tail_g2(sS, part_reg):
    H = v.H; X = v.X
    for k in range(4): a(f"v_add_u32 {vr(H+20+k)}, s{sS}, {vr(v.aT+k)}")
    for du in range(2):
        for dt in range(2):
            a(f"ds_read_b64_tr_b16 {vr(X + 4*dt + 2*du, 2)}, {vr(H+20 + 2*du + dt)}")
    a(f"ds_read_b128 {vr(X+8,4)}, {vr(part_reg)}")
    for dt in range(2):
        a(f"{MF16} {vr(v.D2+4*dt,4)}, {vr(X+8,4)}, {vr(X+4*dt,4)}, {vr(v.D2+4*dt,4)}")
H = v.H
a.label("L_tail")
a(f"s_mov_b32 s{sTgtC}, s{sTgtR}")
emit(prio(2))
spin("L_tspin0", None)
a.begin_auto()
emit(score_mfma())
a(f"v_add_u32 {vr(H+24)}, s{sPc}, {vr(v.partW)}")
emit(fin(0, H+24))
a(f"v_add_u32 {vr(H+26)}, s{sPb}, {vr(v.partR)}")
tail_g2(sSb, H+26)
a.end_auto()
a(f"s_bitcmp1_b32 s{sLAST}, 0")
a(f"s_cbranch_scc0 L_t1")
epilogue()
a.label("L_t1")
a(f"s_add_u32 s{sTgtC}, s{sTgtC}, 4")
emit(arrive())
spin("L_tspin", None)
a.begin_auto()
a(f"v_add_u32 {vr(H+26)}, s{sPc}, {vr(v.partR)}")
tail_g2(sSc, H+26)
a.end_auto()
epilogue()
if DEBUG_TS:
    ts(5)
    a(f"s_load_dwordx2 {sp(sTgt)}, s[0:1], 72")
    a("s_waitcnt vmcnt(0) lgkmcnt(0)")
    a(f"s_mov_b32 s{sTgt+2}, 0x100000")
    a(f"s_mov_b32 s{sTgt+3}, 0x00020000")
    a(f"s_lshl_b32 s{sT0+2}, s2, 2")
    a(f"s_add_u32 s{sT0+2}, s{sT0+2}, s{sW}")
    a(f"s_lshl_b32 s{sT0+2}, s{sT0+2}, 5")
    a(f"v_mov_b32 v0, s{sT0+2}")
    for k in range(6):
        a(f"v_mov_b32 v{4+k}, s{TSREG[k]}")
    a(f"s_lshl_b32 s3, s3, 8")
    a(f"s_or_b32 s3, s3, s{sNT}")
    a(f"v_mov_b32 v10, s3")
    a(f"s_getreg_b32 s{sT0+3}, hwreg(HW_REG_HW_ID)")
    a(f"s_getreg_b32 s{sT0+4}, hwreg(HW_REG_XCC_ID)")
    a(f"s_lshl_b32 s{sT0+4}, s{sT0+4}, 16")
    a(f"s_and_b32 s{sT0+3}, s{sT0+3}, 0xffff")
    a(f"s_or_b32 s{sT0+3}, s{sT0+3}, s{sT0+4}")
    a(f"v_mov_b32 v11, s{sT0+3}")
    a("s_mov_b64 exec, 1")
    a(f"buffer_store_dwordx4 v[4:7], v0, {srd(sTgt)}, 0 offen")
    a(f"buffer_store_dwordx4 v[8:11], v0, {srd(sTgt)}, 0 offen offset:16")
    if FL("ilog"):
        a("v_lshlrev_b32 v0, 1, v0"); a("v_add_u32 v0, 0x40000, v0")
        for k in range(12): a(f"v_mov_b32 v{12+k}, s{56+k}")
        a("v_mov_b32 v24, s86"); a("v_mov_b32 v25, s87")
        for k in range(4): a(f"buffer_store_dwordx4 v[{12+4*k}:{15+4*k}], v0, {srd(sTgt)}, 0 offen offset:{16*k}")
a("s_waitcnt vmcnt(0)")
a.label("L_end")
a("s_endpgm")

body_txt = a.finalize()
hdr = open("cdna_kernels/" + NAME + ".s.ref").read()
head = hdr[:hdr.index("; @launch")]
out = head + f"""; @launch grid=(256,1,1) block=(512,1,1) lds={LDS_BYTES}
.amdgcn_target "amdgcn-amd-amdhsa--gfx950"
.text
.globl {NAME}_kernel
.p2align 8
.type {NAME}_kernel,@function
{NAME}_kernel:
{body_txt}
.section .rodata,"a"
.p2align 6
.amdhsa_kernel {NAME}_kernel
  .amdhsa_next_free_vgpr {NVGPR}
  .amdhsa_next_free_sgpr 102
  .amdhsa_accum_offset 256
  .amdhsa_group_segment_fixed_size 0
  .amdhsa_kernarg_size 80
  .amdhsa_user_sgpr_count 2
  .amdhsa_user_sgpr_kernarg_segment_ptr 1
  .amdhsa_system_sgpr_workgroup_id_x 1
.end_amdhsa_kernel
"""
outp = [x for x in sys.argv[1:] if not x.startswith("--")]
path = outp[0] if outp else "cdna_kernels/" + NAME + ".s"
open(path, "w").write(out)
print("wrote", path, "lines", out.count("\n"), "nops", a.padded)
```

```python
import sys
from asmlib import Asm

NAME = "standalone__sequential_behavior_din__recsys"
DEBUG_TS = "--ts" in sys.argv
FL = lambda x: ("--" + x) in sys.argv
def OPT(name, default):
    for x in sys.argv:
        if x.startswith("--" + name + "="): return x.split("=", 1)[1]
    return default

MISC0 = 131072
IDX = 0
MASKL = 3584
PART = 7232
BIAS = 8000
DIAG = 12096
CNT = 16320
LDS_BYTES = 163840
assert CNT + 32 <= 16384

class V: pass
v = V()
def vr(a, n=1):
    return f"v{a}" if n == 1 else f"v[{a}:{a+n-1}]"
v.aH = 0; v.aT = 4; v.idxA = 8; v.idx = 9; v.lane_off = 10; v.maskA = 11
v.m0 = 12; v.m1 = 13; v.partW = 14; v.partR = 15; v.aDiag = 16; v.diagW = 18
v.biasA = 19; v.outA = 20; v.tmp = 21; v.b2c = 22; v.Q = 24; v.D3 = 28; v.D2 = 32
v.A3 = 40; v.BR = 48; v.Y = 64; v.X = 80; v.Y0 = 64; v.Y1 = 80; v.H = 96; v.WAC = 128; v.WD = 192; v.WE = 224
NVGPR = 256

sHist = 4; sW1 = 8; sOut = 12; sTgt = 16; sMask = 20; sB1 = 24; sW2 = 28; sB2 = 32
sEND = 34; sW = 36; sWoff = 37; sG = 38; sNT = 39; sFIRST = 40; sLAST = 42
sDelta = 44; sMB = 45; sSel = 46; sC = 48; sB2v = 49
sT0 = 50
sP = 70
sBal = 80
sRet = 94
sTgtC = 93
sTgtR = 92
sCv = 55
sFav = 38
CTR = 512

a = Asm()
TSREG = {0: 96, 1: 97, 2: 98, 3: 99, 4: 100, 5: 101}
TSMAP = dict(zip(OPT("tsmap", "B1,B2a,B2b,B4").split(","), (1, 2, 3, 4)))
def ts(k):
    if not DEBUG_TS: return
    name = k
    if isinstance(k, str) and k not in TSMAP and k != "B4": return
    slot = TSMAP.get(k, None) if isinstance(k, str) else k
    if slot is not None:
        a(f"{'s_memtime' if FL('tscyc') else 's_memrealtime'} s[{sT0+18}:{sT0+19}]")
        a("s_waitcnt lgkmcnt(0)")
        a(f"s_mov_b32 s{TSREG[slot]}, s{sT0+18}")
    if name == "B4" or name == 5:
        a(f"s_memtime s[{sT0+18}:{sT0+19}]")
        a("s_waitcnt lgkmcnt(0)")
        if name == "B4": a(f"s_mov_b32 s3, s{sT0+18}")
        else: a(f"s_sub_u32 s3, s{sT0+18}, s3")

PROF = FL("prof")
def pm(k):
    return [f"s_memtime s[{80+2*k}:{81+2*k}]"] if PROF else []
def pacc():
    if not PROF: return []
    return ["s_sub_u32 s91, s82, s80", "s_add_u32 s97, s97, s91", "s_sub_u32 s91, s84, s82", "s_add_u32 s98, s98, s91",
            "s_sub_u32 s91, s86, s84", "s_add_u32 s99, s99, s91"]
def srd(r): return f"s[{r}:{r+3}]"
def sp(r): return f"s[{r}:{r+1}]"

def dma_a(voff, srdreg, soff, slot, nt):
    f = " nt" if nt else ""
    return [f"s_add_u32 m0, s{sWoff}, {slot*8192}",
            f"buffer_load_dwordx4 {vr(voff)}, {srd(srdreg)}, {soff} offen{f} lds"]
def dma_b(voff, srdreg, soff, slot, nt):
    f = " nt" if nt else ""
    return [f"s_add_u32 m0, s{sWoff}, {slot*8192 + 4096 - 128}",
            f"buffer_load_dwordx4 {vr(voff)}, {srd(srdreg)}, {soff} offen offset:128{f} lds"]
INLOOP = False
def emit(lst):
    for x in [y for z in lst for y in z.split("\n")]:
        if INLOOP and FL("nodma") and x.startswith("buffer_load"): continue
        if INLOOP and FL("nosig") and x.startswith(("v_exp", "v_rcp", "v_add_f32")): continue
        if INLOOP and FL("nog1") and x.startswith("v_mfma_f32_32x32"): continue
        if x.startswith("; skip"): continue
        a(x)
def dma(voff, srdreg, soff, slot, nt):
    emit(dma_a(voff, srdreg, soff, slot, nt)); emit(dma_b(voff, srdreg, soff, slot, nt))

MF32 = "v_mfma_f32_32x32x16_bf16"
MF16 = "v_mfma_f32_16x16x32_bf16"
NT_HIST = not FL("nont")

a("s_cmp_ge_u32 s2, 256")
a("s_cbranch_scc1 L_end")
ts(0)
a(f"s_load_dwordx2 {sp(sMask)}, s[0:1], 16")
a(f"s_load_dwordx2 {sp(sW1)}, s[0:1], 24")
a(f"s_load_dwordx2 {sp(sTgt)}, s[0:1], 0")
a(f"s_load_dwordx2 {sp(sB1)}, s[0:1], 32")
a(f"s_load_dwordx2 {sp(sW2)}, s[0:1], 40")
a(f"s_load_dwordx2 {sp(sB2)}, s[0:1], 48")
a(f"s_load_dwordx2 {sp(sHist)}, s[0:1], 8")
a(f"s_load_dwordx2 {sp(sOut)}, s[0:1], 56")
tLane, tHi, tM, tQ, tN4, tA, tB, tC, tD, tE, tF, tG = [v.BR + i for i in range(12)]
a(f"v_lshrrev_b32 {vr(tA)}, 6, v0")
a(f"v_and_b32 {vr(tLane)}, 63, v0")
a(f"v_readfirstlane_b32 s{sT0}, {vr(tA)}")
a(f"v_and_b32 v0, 255, v0")
a(f"v_lshrrev_b32 {vr(tHi)}, 5, {vr(tLane)}")
a(f"v_and_b32 {vr(tM)}, 31, {vr(tLane)}")
a(f"v_lshrrev_b32 {vr(tQ)}, 4, {vr(tLane)}")
a(f"v_and_b32 {vr(tN4)}, 15, {vr(tLane)}")
a(f"s_and_b32 s{sW}, s{sT0}, 3")
a(f"s_lshr_b32 s{sG}, s{sT0}, 2")
a(f"s_lshl_b32 s2, s2, 1")
a(f"s_add_u32 s2, s2, s{sG}")
a(f"s_lshl_b32 s{sWoff}, s{sW}, 10")
a(f"s_lshl_b32 s{sT0}, s{sG}, 16")
a(f"s_add_u32 s{sWoff}, s{sWoff}, s{sT0}")
a(f"s_lshl_b32 s{sMB}, s{sG}, 14")
a(f"s_add_u32 s{sMB}, s{sMB}, {MISC0}")
a(f"s_mov_b32 s{sC}, 0xBFB8AA3B")
a(f"v_lshlrev_b32 {vr(tA)}, 3, {vr(tLane)}")
a(f"s_mul_i32 s{sT0}, s{sW}, 800")
a(f"v_add_u32 {vr(tA)}, s{sT0}, {vr(tA)}")
a(f"v_mov_b32 {vr(tB)}, 0x10000")
a(f"v_cmp_gt_u32 vcc, 50, {vr(tLane)}")
a(f"v_cndmask_b32 {vr(tA)}, {vr(tB)}, {vr(tA)}, vcc")
a(f"v_lshrrev_b32 {vr(tB)}, 3, {vr(tLane)}")
a(f"s_lshl_b32 s{sT0}, s{sW}, 3")
a(f"v_add_u32 {vr(tB)}, s{sT0}, {vr(tB)}")
a(f"v_and_b32 {vr(tD)}, 7, {vr(tLane)}")
a(f"v_and_b32 {vr(tC)}, 2, {vr(tB)}")
a(f"v_lshlrev_b32 {vr(tC)}, 1, {vr(tC)}")
a(f"v_xor_b32 {vr(tC)}, {vr(tC)}, {vr(tD)}")
a(f"v_lshlrev_b32 {vr(tC)}, 4, {vr(tC)}")
v.wv = v.Q
a(f"v_lshl_add_u32 {vr(v.wv)}, {vr(tB)}, 8, {vr(tC)}")
a(f"s_mul_i32 s{sT0}, s2, 3200")
a("s_waitcnt lgkmcnt(0)")
a(f"s_add_u32 s{sMask}, s{sMask}, s{sT0}")
a(f"s_addc_u32 s{sMask+1}, s{sMask+1}, 0")
a(f"s_mov_b32 s{sMask+2}, 3200")
a(f"s_mov_b32 s{sMask+3}, 0x00020000")
ts("karg")
MK = v.Y1
a(f"buffer_load_dwordx2 {vr(MK,2)}, {vr(tA)}, {srd(sMask)}, 0 offen")
a(f"buffer_load_dwordx2 {vr(MK+2,2)}, {vr(tA)}, {srd(sMask)}, 0 offen offset:400")
a(f"s_load_dword s{sB2v}, {sp(sB2)}, 0")
a(f"s_mov_b32 s{sW1+2}, 131072")
a(f"s_mov_b32 s{sW1+3}, 0x00020000")
sWs = 79; sWb = 3
a(f"s_lshl_b32 s{sWb}, s{sG}, 16")
def wdma(s):
    return [[f"s_add_u32 s{sWs}, s{sWb}, {s*8192}"] + dma_a(v.wv, sW1, f"s{sWs}", s, False),
            dma_b(v.wv, sW1, f"s{sWs}", s, False)]
WD_ = [x for s_ in range(8) for x in wdma(s_)]
def cut(mark):
    blk = a.lines[mark:]
    del a.lines[mark:]
    return blk
def interleave(chunks, blk):
    n = len(chunks)
    pos = [int(len(blk) * (k + 0.3) / n) for k in range(n)] if n else []
    k = 0
    full = True
    for i, l in enumerate(blk):
        ok = full and not (l.startswith(("s_addc", "s_cselect", "s_cbranch", "s_movrels")) or l.endswith(":"))
        while k < n and i >= pos[k] and ok:
            for x in chunks[k]: a(x)
            k += 1
        a(l)
        if l.startswith("s_mov_b64 exec"): full = l.endswith("-1")
    while k < n:
        for x in chunks[k]: a(x)
        k += 1
NA = 16
a(f"s_lshl_b32 s{sT0}, s2, 11")
a(f"s_add_u32 s{sTgt}, s{sTgt}, s{sT0}")
a(f"s_addc_u32 s{sTgt+1}, s{sTgt+1}, 0")
a(f"s_mov_b32 s{sTgt+2}, 2048")
a(f"s_mov_b32 s{sTgt+3}, 0x00020000")
a(f"s_mov_b32 s{sB1+2}, 256")
a(f"s_mov_b32 s{sB1+3}, 0x00020000")
a(f"s_mov_b32 s{sW2+2}, 256")
a(f"s_mov_b32 s{sW2+3}, 0x00020000")
a(f"s_lshl_b32 s{sT0}, s{sW}, 10")
a(f"s_add_u32 s{sT0}, s{sT0}, s{sMB}")
a(f"s_add_u32 m0, s{sT0}, {BIAS}")
a(f"s_cmp_ge_u32 s{sW}, 2")
a("s_cbranch_scc1 L_stg_bw")
a(f"s_lshl_b32 s{sT0}, s{sW}, 2")
a(f"v_add_u32 {vr(tA)}, s{sT0}, {vr(tQ)}")
a(f"v_xor_b32 {vr(tC)}, {vr(tA)}, {vr(tN4)}")
a(f"v_lshlrev_b32 {vr(tC)}, 4, {vr(tC)}")
a(f"v_lshl_add_u32 {vr(tC)}, {vr(tA)}, 8, {vr(tC)}")
a(f"buffer_load_dwordx4 {vr(tC)}, {srd(sTgt)}, 0 offen lds")
a("s_branch L_stg_done")
a.label("L_stg_bw")
a(f"v_lshlrev_b32 {vr(tC)}, 4, {vr(tLane)}")
a(f"s_cmp_eq_u32 s{sW}, 2")
a("s_cbranch_scc0 L_stg_w2")
a(f"buffer_load_dwordx4 {vr(tC)}, {srd(sB1)}, 0 offen lds")
a("s_branch L_stg_done")
a.label("L_stg_w2")
a(f"buffer_load_dwordx4 {vr(tC)}, {srd(sW2)}, 0 offen lds")
a.label("L_stg_done")
NSTG = 1
a(f"s_mul_i32 s{sT0}, s2, {8*51200}")
a(f"s_add_u32 s{sHist}, s{sHist}, s{sT0}")
a(f"s_addc_u32 s{sHist+1}, s{sHist+1}, 0")
a(f"s_mov_b32 s{sHist+2}, {8*51200}")
a(f"s_mov_b32 s{sHist+3}, 0x00020000")
a(f"s_lshl_b32 s{sT0}, s2, 11")
a(f"s_add_u32 s{sOut}, s{sOut}, s{sT0}")
a(f"s_addc_u32 s{sOut+1}, s{sOut+1}, 0")
a(f"s_mov_b32 s{sOut+2}, 256")
a(f"s_mov_b32 s{sOut+3}, 0x00020000")

def addm(dst, const, src):
    a(f"s_add_u32 s{sT0+9}, s{sMB}, {const}")
    a(f"v_add_u32 {vr(dst)}, s{sT0+9}, {vr(src)}")

tH, tI = v.BR + 12, v.BR + 13
sRB = sT0 + 8
sgT = v.Y0
aW = v.D3
tBW = v.tmp

def blk_fill():
    F4 = v.H
    a(f"v_lshlrev_b32 {vr(tA)}, 4, v0")
    addm(tA, 0, tA)
    a(f"v_mov_b32 {vr(tB)}, 0")
    a(f"v_cmp_gt_u32 vcc, 224, v0")
    for i in range(4, 8): a(f"v_mov_b32 {vr(F4+i)}, 0")
    a(f"v_mov_b32 {vr(tC)}, -1")
    a(f"v_cndmask_b32 {vr(F4)}, {vr(tB)}, {vr(tC)}, vcc")
    for i in range(1, 4): a(f"v_mov_b32 {vr(F4+i)}, {vr(F4)}")
    a(f"ds_write_b128 {vr(tA)}, {vr(F4,4)}")
    a(f"v_add_u32 {vr(tC)}, 4096, {vr(tA)}")
    a(f"s_add_u32 s{sT0}, s{sMB}, {BIAS-16}")
    a(f"v_min_u32 {vr(tC)}, s{sT0}, {vr(tC)}")
    a(f"ds_write_b128 {vr(tC)}, {vr(F4+4,4)}")
    a(f"ds_write_b128 {vr(tA)}, {vr(F4+4,4)} offset:{DIAG}")
    a(f"v_add_u32 {vr(tC)}, {DIAG+4096}, {vr(tA)}")
    a(f"s_add_u32 s{sT0}, s{sMB}, {DIAG+4224-16}")
    a(f"v_min_u32 {vr(tC)}, s{sT0}, {vr(tC)}")
    a(f"ds_write_b128 {vr(tC)}, {vr(F4+4,4)}")

def phi(dst, r, t):
    a(f"v_lshrrev_b32 {vr(dst)}, 2, {vr(r)}")
    a(f"v_and_b32 {vr(dst)}, 4, {vr(dst)}")
    a(f"v_lshrrev_b32 {vr(t)}, 1, {vr(r)}")
    a(f"v_and_b32 {vr(t)}, 3, {vr(t)}")
    a(f"v_or_b32 {vr(dst)}, {vr(dst)}, {vr(t)}")

def blk_dma():
    a(f"v_lshrrev_b32 {vr(tB)}, 3, {vr(tLane)}")
    a(f"s_lshl_b32 s{sT0}, s{sW}, 3")
    a(f"v_add_u32 {vr(tB)}, s{sT0}, {vr(tB)}")
    phi(tC, tB, tD)
    a(f"v_and_b32 {vr(tD)}, 7, {vr(tLane)}")
    a(f"v_xor_b32 {vr(tC)}, {vr(tC)}, {vr(tD)}")
    a(f"v_lshlrev_b32 {vr(v.lane_off)}, 4, {vr(tC)}")
    a(f"v_lshlrev_b32 {vr(v.idxA)}, 1, {vr(tB)}")
    addm(v.idxA, IDX, v.idxA)

def blk_cd():
    a(f"v_and_b32 {vr(tH)}, 3, {vr(tN4)}")
    a(f"v_lshrrev_b32 {vr(tI)}, 1, {vr(tH)}")
    a(f"s_and_b32 s{sT0}, s{sW}, 1")
    a(f"s_lshl_b32 s{sT0}, s{sT0}, 2")
    a(f"v_or_b32 {vr(tI)}, s{sT0}, {vr(tI)}")
    a(f"v_and_b32 {vr(tH)}, 1, {vr(tH)}")
    a(f"v_lshlrev_b32 {vr(tH)}, 3, {vr(tH)}")
    a(f"s_lshr_b32 s{sT0+1}, s{sW}, 1")
    a(f"s_lshl_b32 s{sT0+1}, s{sT0+1}, 12")
    a(f"v_add_u32 {vr(tH)}, s{sT0+1}, {vr(tH)}")

def blk_aW():
    a(f"v_and_b32 {vr(tE)}, 1, {vr(tQ)}")
    a(f"v_lshl_or_b32 {vr(tD)}, {vr(tE)}, 1, {vr(tI)}")
    a(f"v_lshrrev_b32 {vr(tA)}, 2, {vr(tN4)}")
    a(f"v_lshl_add_u32 {vr(tB)}, {vr(tHi)}, 3, {vr(tA)}")
    a(f"v_and_b32 {vr(tF)}, 2, {vr(tA)}")
    a(f"v_lshlrev_b32 {vr(tF)}, 1, {vr(tF)}")
    a(f"v_xor_b32 {vr(tF)}, {vr(tF)}, {vr(tD)}")
    a(f"v_lshl_add_u32 {vr(tF)}, {vr(tF)}, 4, {vr(tH)}")
    for f in range(2):
        for u in range(2):
            a(f"v_add_u32 {vr(tE)}, {16*f + 4*u}, {vr(tB)}")
            a(f"v_lshl_add_u32 {vr(aW + 2*f + u)}, {vr(tE)}, 7, {vr(tF)}")

def blk_aH():
    a(f"s_lshl_b32 s{sRB}, s{sG}, 16")
    phi(tA, tM, tB)
    a(f"v_xor_b32 {vr(tA)}, {vr(tA)}, {vr(tHi)}")
    a(f"v_lshlrev_b32 {vr(tB)}, 7, {vr(tM)}")
    a(f"v_add_u32 {vr(tB)}, s{sRB}, {vr(tB)}")
    for k in range(4):
        a(f"v_xor_b32 {vr(tC)}, {2*k}, {vr(tA)}")
        a(f"v_lshl_add_u32 {vr(v.aH+k)}, {vr(tC)}, 4, {vr(tB)}")

def blk_aT():
    a(f"s_lshl_b32 s{sRB}, s{sG}, 16")
    a(f"v_lshrrev_b32 {vr(tA)}, 2, {vr(tN4)}")
    a(f"v_and_b32 {vr(tB)}, 1, {vr(tA)}")
    a(f"v_lshlrev_b32 {vr(tB)}, 4, {vr(tB)}")
    a(f"v_lshrrev_b32 {vr(tA)}, 1, {vr(tA)}")
    a(f"v_add_u32 {vr(tB)}, {vr(tA)}, {vr(tB)}")
    a(f"v_lshl_add_u32 {vr(tB)}, {vr(tQ)}, 2, {vr(tB)}")
    a(f"v_add_u32 {vr(tC)}, s{sRB}, {vr(tH)}")
    for u in range(2):
        a(f"v_add_u32 {vr(tE)}, {2*u}, {vr(tB)}")
        phi(tF, tE, tG)
        a(f"v_xor_b32 {vr(tF)}, {vr(tF)}, {vr(tI)}")
        a(f"v_lshl_add_u32 {vr(tE)}, {vr(tE)}, 7, {vr(tC)}")
        for dt in range(2):
            a(f"v_xor_b32 {vr(tG)}, {2*dt}, {vr(tF)}")
            a(f"v_lshl_add_u32 {vr(v.aT + 2*u + dt)}, {vr(tG)}, 4, {vr(tE)}")

def blk_part():
    a(f"s_lshl_b32 s{sT0}, s{sW}, 6")
    a(f"v_lshlrev_b32 {vr(tA)}, 2, {vr(tN4)}")
    a(f"v_add_u32 {vr(tA)}, s{sT0}, {vr(tA)}")
    addm(v.partW, PART, tA)
    a(f"v_and_b32 {vr(tA)}, 3, {vr(tN4)}")
    a(f"v_lshlrev_b32 {vr(tA)}, 6, {vr(tA)}")
    a(f"v_lshl_add_u32 {vr(tA)}, {vr(tQ)}, 4, {vr(tA)}")
    addm(v.partR, PART, tA)
    a(f"v_lshlrev_b32 {vr(tA)}, 1, {vr(tN4)}")
    addm(v.maskA, MASKL, tA)

def blk_diag():
    a(f"v_and_b32 {vr(tA)}, 0x13, {vr(tM)}")
    a(f"v_lshrrev_b32 {vr(tB)}, 1, {vr(tM)}")
    a(f"v_and_b32 {vr(tB)}, 4, {vr(tB)}")
    a(f"v_or_b32 {vr(tA)}, {vr(tA)}, {vr(tB)}")
    a(f"v_lshlrev_b32 {vr(tB)}, 1, {vr(tM)}")
    a(f"v_and_b32 {vr(tB)}, 8, {vr(tB)}")
    a(f"v_or_b32 {vr(tA)}, {vr(tA)}, {vr(tB)}")
    a(f"v_lshrrev_b32 {vr(tB)}, 2, {vr(tM)}")
    a(f"v_and_b32 {vr(tB)}, 1, {vr(tB)}")
    a(f"v_xor_b32 {vr(tB)}, {vr(tB)}, {vr(tHi)}")
    a(f"v_lshrrev_b32 {vr(tC)}, 4, {vr(tM)}")
    a(f"v_lshl_or_b32 {vr(tC)}, {vr(tB)}, 1, {vr(tC)}")
    a(f"v_lshlrev_b32 {vr(tD)}, 4, {vr(tA)}")
    a(f"v_mov_b32 {vr(tE)}, 512")
    for f in range(2):
        a(f"v_cmp_eq_u32 vcc, {f}, {vr(tC)}")
        a(f"v_cndmask_b32 {vr(tF)}, {vr(tE)}, {vr(tD)}, vcc")
        addm(v.aDiag + f, DIAG, tF)
    a(f"v_and_b32 {vr(tD)}, 7, {vr(tA)}")
    a(f"v_lshrrev_b32 {vr(tD)}, 1, {vr(tD)}")
    a(f"v_lshl_add_u32 {vr(tD)}, {vr(tC)}, 2, {vr(tD)}")
    a(f"v_and_b32 {vr(tE)}, 1, {vr(tM)}")
    a(f"v_lshlrev_b32 {vr(tE)}, 4, {vr(tE)}")
    a(f"v_mov_b32 {vr(tF)}, 0x3F80")
    a(f"v_lshlrev_b32 {vr(tE)}, {vr(tE)}, {vr(tF)}")
    a(f"v_mov_b32 {vr(tF)}, 0")
    for f in range(2):
        for rho in range(4):
            a(f"v_cmp_eq_u32 vcc, {4*f+rho}, {vr(tD)}")
            a(f"v_cndmask_b32 {vr(v.D2 + 4*f + rho)}, {vr(tF)}, {vr(tE)}, vcc")

def blk_diagW():
    a(f"s_mul_i32 s{sT0}, s{sW}, 528")
    a(f"v_and_b32 {vr(tA)}, 7, {vr(tM)}")
    a(f"v_lshlrev_b32 {vr(tA)}, 1, {vr(tA)}")
    a(f"v_lshl_add_u32 {vr(tA)}, {vr(tM)}, 4, {vr(tA)}")
    a(f"v_add_u32 {vr(tA)}, s{sT0}, {vr(tA)}")
    addm(v.diagW, DIAG, tA)

def blk_bias():
    a(f"s_lshl_b32 s{sT0}, s{sW}, 7")
    a(f"v_lshlrev_b32 {vr(tA)}, 4, {vr(tHi)}")
    a(f"v_add_u32 {vr(tA)}, s{sT0}, {vr(tA)}")
    addm(v.biasA, BIAS, tA)
    a(f"v_lshrrev_b32 {vr(tA)}, 2, {vr(tM)}")
    a(f"v_lshl_add_u32 {vr(tBW)}, {vr(tA)}, 9, {vr(v.biasA)}")
    a(f"s_lshl_b32 s{sT0}, s{sW}, 6")
    a(f"v_lshlrev_b32 {vr(tA)}, 1, {vr(tLane)}")
    a(f"v_add_u32 {vr(tA)}, s{sT0}, {vr(tA)}")
    a(f"v_mov_b32 {vr(tB)}, 0x40000000")
    a(f"v_cmp_gt_u32 vcc, 32, {vr(tLane)}")
    a(f"v_cndmask_b32 {vr(v.outA)}, {vr(tB)}, {vr(tA)}, vcc")

def blk_stg():
    a(f"v_lshrrev_b32 {vr(tA)}, 2, {vr(tM)}")
    a(f"v_lshlrev_b32 {vr(tB)}, 8, {vr(tA)}")
    addm(sgT, BIAS, tB)
    a(f"v_xor_b32 {vr(sgT+1)}, {vr(tA)}, {vr(tHi)}")
    a(f"s_lshl_b32 s{sT0}, s{sW}, 2")
    a(f"v_lshrrev_b32 {vr(tA)}, 3, {vr(tM)}")
    a(f"v_add_u32 {vr(sgT+2)}, s{sT0}, {vr(tA)}")
    a(f"v_and_b32 {vr(tA)}, 7, {vr(tM)}")
    a(f"v_lshlrev_b32 {vr(tA)}, 1, {vr(tA)}")
    addm(sgT+3, BIAS, tA)
    a(f"s_lshl_b32 s{sT0}, s{sW}, 6")
    a(f"v_lshlrev_b32 {vr(tA)}, 3, {vr(tHi)}")
    a(f"v_add_u32 {vr(tA)}, s{sT0}, {vr(tA)}")
    addm(sgT+4, BIAS + 2048, tA)
    a(f"v_xor_b32 {vr(tA)}, {vr(tQ)}, {vr(tN4)}")
    a(f"v_and_b32 {vr(tA)}, 1, {vr(tA)}")
    a(f"v_lshlrev_b32 {vr(tA)}, 9, {vr(tA)}")
    a(f"v_lshrrev_b32 {vr(tB)}, 1, {vr(tQ)}")
    a(f"v_lshl_add_u32 {vr(tA)}, {vr(tB)}, 3, {vr(tA)}")
    a(f"v_add_u32 {vr(tA)}, s{sT0}, {vr(tA)}")
    addm(sgT+5, BIAS + 3072, tA)

def grab(fn):
    m = len(a.lines); fn(); return cut(m)
def weave(main, side, start=0):
    n = len(main); k = 0
    for i, x in enumerate(main):
        for y in x.split("\n"): a(y)
        want = (len(side) * (i + 1 - start)) // max(1, n - start) if i >= start else 0
        while k < want:
            a(side[k]); k += 1
    while k < len(side):
        a(side[k]); k += 1

LATE = {"aH": blk_aH, "aT": blk_aT, "part": blk_part, "bias": blk_bias, "diag": blk_diag, "diagW": blk_diagW}
late = [x for x in OPT("late", "aH,aT,part,bias").split(",") if x]
early = [x for x in LATE if x not in late]
ND0 = int(OPT("nd0", "8"))
_m = len(a.lines)
blk_fill(); blk_dma(); blk_cd(); blk_aW(); blk_stg()
for x in early: LATE[x]()
interleave(WD_[:ND0], cut(_m))
a(f"s_mov_b32 s{sSel}, 0xFFFF0000")
a(f"s_mov_b32 s{sSel+1}, 0xFFFF0000")
ts("static")
a(f"s_waitcnt vmcnt({ND0 + NSTG})")
ts("maskw")
_m = len(a.lines)
tP = v.Y1 + 4
for b in range(2):
    for e in range(4):
        src = MK + 2*b + (e >> 1)
        lit = "0x7fff" if e % 2 == 0 else "0x7fff0000"
        bal = sBal + 2 * (4*b + e)
        a(f"v_and_b32 {vr(tA)}, {lit}, {vr(src)}")
        a(f"v_cmp_ne_u32 {sp(bal)}, 0, {vr(tA)}")
for b in range(2):
    for e in range(4):
        bal = sBal + 2 * (4*b + e)
        a(f"v_mbcnt_lo_u32_b32 {vr(tP + 4*b + e)}, s{bal}, 0")
        a(f"v_mbcnt_hi_u32_b32 {vr(tP + 4*b + e)}, s{bal+1}, {vr(tP + 4*b + e)}")
        a(f"s_bcnt1_i32_b64 s{sT0 + 4*b + e}, {sp(bal)}")
for b in range(2):
    t0 = sT0 + 4*b
    a(f"s_add_u32 s{sT0+10}, s{t0}, s{t0+1}")
    a(f"s_add_u32 s{sT0+11}, s{sT0+10}, s{t0+2}")
    a(f"s_add_u32 s{sT0+8+b}, s{sT0+11}, s{t0+3}")
    a(f"s_mov_b32 s{t0+1}, s{t0}")
    a(f"s_mov_b32 s{t0}, 0")
    a(f"s_mov_b32 s{t0+2}, s{sT0+10}")
    a(f"s_mov_b32 s{t0+3}, s{sT0+11}")
    a(f"s_add_u32 s{sT0+12+b}, s{sT0+8+b}, 31")
    a(f"s_lshr_b32 s{sT0+12+b}, s{sT0+12+b}, 5")
    a(f"s_max_u32 s{sT0+12+b}, s{sT0+12+b}, 1")
a(f"s_lshl_b32 s{sT0+14}, s{sW}, 3")
a(f"s_add_u32 s{sT0+14}, s{sT0+14}, {CNT}")
a(f"s_add_u32 s{sT0+14}, s{sT0+14}, s{sMB}")
a(f"v_mov_b32 {vr(tA)}, s{sT0+14}")
tF2 = tF
assert tF2 % 2 == 0
a(f"v_mov_b32 {vr(tF2)}, s{sT0+12}")
a(f"v_mov_b32 {vr(tF2+1)}, s{sT0+13}")
a(f"ds_write_b64 {vr(tA)}, {vr(tF2,2)}")
ND1 = int(OPT("nd1", "4"))
interleave(WD_[ND0:ND0+ND1], cut(_m))
a("s_waitcnt lgkmcnt(0)")
a("s_barrier")
ts("B1")
_m = len(a.lines)
tR = v.H + 8
a(f"s_add_u32 s{sT0+14}, s{sMB}, {CNT}")
a(f"v_mov_b32 {vr(tA)}, s{sT0+14}")
a(f"ds_read_b128 {vr(tR,4)}, {vr(tA)}")
a(f"ds_read_b128 {vr(tR+4,4)}, {vr(tA)} offset:16")
a(f"s_mov_b32 s{sDelta}, 2112")
a(f"v_lshlrev_b32 {vr(tB)}, 2, {vr(tLane)}")
a(f"s_mul_i32 s{sT0+16}, s{sW}, 400")
a(f"v_add_u32 {vr(tB)}, s{sT0+16}, {vr(tB)}")
a("s_waitcnt lgkmcnt(0)")
for j in range(8):
    a(f"v_readfirstlane_b32 s{sP+1+j}, {vr(tR+j)}")
a(f"s_mov_b32 s{sP}, 0")
for j in range(8):
    a(f"s_add_u32 s{sP+1+j}, s{sP+1+j}, s{sP+j}")
a(f"s_lshl_b32 m0, s{sW}, 1")
a(f"s_movrels_b32 s{sT0+14}, s{sP}")
a(f"s_movrels_b32 s{sT0+15}, s{sP+1}")
for b in range(2):
    a(f"s_lshl_b32 s{sT0+14+b}, s{sT0+14+b}, 6")
    a(f"s_add_u32 s{sT0+14+b}, s{sT0+14+b}, s{sMB}")
    for e in range(4):
        bal = sBal + 2 * (4*b + e)
        a(f"s_lshl_b32 s{sT0+16}, s{sT0+4*b+e}, 1")
        a(f"s_add_u32 s{sT0+16}, s{sT0+16}, s{sT0+14+b}")
        a(f"v_lshl_add_u32 {vr(tC if e % 2 == 0 else tE)}, {vr(tP+4*b+e)}, 1, s{sT0+16}")
        a(f"v_add_u32 {vr(tD if e % 2 == 0 else tG)}, {200*b + e}, {vr(tB)}")
        a(f"s_mov_b64 exec, {sp(bal)}")
        a(f"ds_write_b16 {vr(tC if e % 2 == 0 else tE)}, {vr(tD if e % 2 == 0 else tG)} offset:{IDX}")
        op = "ds_write_b16" if e % 2 == 0 else "ds_write_b16_d16_hi"
        a(f"{op} {vr(tC if e % 2 == 0 else tE)}, {vr(MK + 2*b + (e>>1))} offset:{MASKL + 64}")
        a(f"s_mov_b64 exec, -1")
a(f"s_mov_b32 s{sNT}, s{sP+8}")
a(f"s_mov_b64 {sp(sFIRST)}, 0")
a(f"s_mov_b64 {sp(sLAST)}, 0")
for j in range(8):
    if j > 0:
        a(f"s_lshl_b64 {sp(sT0+16)}, 1, s{sP+j}")
        a(f"s_or_b64 {sp(sFIRST)}, {sp(sFIRST)}, {sp(sT0+16)}")
    a(f"s_add_u32 s{sT0+18}, s{sP+j+1}, 1")
    a(f"s_lshl_b64 {sp(sT0+16)}, 1, s{sT0+18}")
    a(f"s_or_b64 {sp(sLAST)}, {sp(sLAST)}, {sp(sT0+16)}")
a(f"s_sub_u32 s{sT0+18}, s{sNT}, 1")
a(f"s_lshl_b64 {sp(sEND)}, 1, s{sT0+18}")
if FL("nofirst"): a(f"s_mov_b64 {sp(sFIRST)}, 0")
if FL("nolast"): a(f"s_mov_b64 {sp(sLAST)}, 0")
interleave(WD_[ND0+ND1:], cut(_m))
ts("lists")
a(f"s_waitcnt vmcnt({OPT('b2vm', '8')}) lgkmcnt(0)")
a("s_barrier")
ts("B2a")
B1R = v.WAC + 32
TQ = v.WAC + 40
IX = [v.WAC + 48, v.b2c, v.b2c + 1, v.m0, v.m1]
aW1 = [v.WAC + 60 + k for k in range(4)]
aW1b = [v.WAC + 28 + k for k in range(4)]
TFR = v.Y
AD = v.WAC
AC = v.BR
def tr_list(dst, slot0, base, tiles=range(4)):
    return [f"ds_read_b64_tr_b16 {vr(dst + 8*T + 4*f + 2*u, 2)}, {vr(base[2*f + u])} offset:{(slot0+T)*8192}"
            for T in tiles for f in range(2) for u in range(2)]
aW0 = [aW + k for k in range(4)]
def qshift():
    return [f"v_alignbit_b32 {vr(v.Q+k)}, {vr(v.Q+k+1)}, {vr(v.Q+k)}, 16" for k in range(3)] + \
           [f"v_lshrrev_b32 {vr(v.Q+3)}, 16, {vr(v.Q+3)}"]
for k in range(4): a(f"v_add_u32 {vr(aW1[k])}, 0x10000, {vr(aW+k)}")
for t in range(5):
    a(f"ds_read_u16 {vr(IX[t])}, {vr(v.idxA)} offset:{64*t}")
a(f"ds_read_u16 {vr(v.idx)}, {vr(v.idxA)} offset:{64*5}")
ad = []
for ks in range(8):
    ad += [f"v_xor_b32 {vr(AD+8+ks)}, {2*ks}, {vr(sgT+1)}", f"v_lshl_add_u32 {vr(AD+8+ks)}, {vr(AD+8+ks)}, 4, {vr(sgT)}"]
for b in range(8):
    ad += [f"v_xor_b32 {vr(AD+b)}, {b}, {vr(sgT+2)}", f"v_lshl_add_u32 {vr(AD+b)}, {vr(AD+b)}, 4, {vr(sgT+3)}"]
weave(tr_list(v.H, 0, aW1), ad)
small = [f"ds_read_b64 {vr(B1R+2*i,2)}, {vr(sgT+4)} offset:{16*i}" for i in range(4)]
small += [f"ds_read_b64 {vr(v.A3+4*g+2*hh,2)}, {vr(sgT+5)} offset:{32*g+16*hh}" for g in range(2) for hh in range(2)]
small += [f"ds_read_u16_d16_hi {vr(TQ+b)}, {vr(AD+b)} offset:{256*b}" for b in range(8)]
small += [f"ds_read_b128 {vr(TFR+4*ks,4)}, {vr(AD+8+ks)}" for ks in range(8)]
lateI = []
for x in late: lateI += grab(LATE[x])
rdA = small + tr_list(v.WE, 0, aW0)
weave(rdA, lateI)
a("s_waitcnt lgkmcnt(15)")
for b in range(8):
    a(f"v_mul_f32 {vr(TQ+b)}, s{sC}, {vr(TQ+b)}")
for k in range(4):
    a(f"v_cvt_pk_bf16_f32 {vr(v.Q+k)}, {vr(TQ+2*k)}, {vr(TQ+2*k+1)}")
a(f"ds_write_b16 {vr(v.diagW)}, {vr(v.Q)}")
emit(qshift())
a(f"v_add_u32 {vr(v.diagW)}, 2112, {vr(v.diagW)}")
for k in range(4): a(f"v_add_u32 {vr(aW1b[k])}, 0x10000, {vr(aW+k)}")
a("s_waitcnt lgkmcnt(0)")
for t in range(5):
    a(f"v_lshl_add_u32 {vr(IX[t])}, {vr(IX[t])}, 8, {vr(v.lane_off)}")
ts("preB3a")
a("s_waitcnt vmcnt(0)")
a("s_barrier")
ts("B3a")
Fr = lambda f: vr(v.D2 + 4*f, 4)
def wac(T):
    D = vr(v.WAC + 16*T, 16)
    return [f"{MF32} {D}, {Fr(0)}, {vr(v.WE + 8*T, 4)}, 0", f"{MF32} {D}, {Fr(1)}, {vr(v.WE + 8*T + 4, 4)}, {D}",
            f"{MF32} {D}, {Fr(0)}, {vr(v.H + 8*T, 4)}, {D}", f"{MF32} {D}, {Fr(1)}, {vr(v.H + 8*T + 4, 4)}, {D}"]
def scale(r, n):
    if not FL("pkscale"):
        return [f"v_mul_f32 {vr(r+i)}, s{sC}, {vr(r+i)}\nv_mul_f32 {vr(r+i+1)}, s{sC}, {vr(r+i+1)}" for i in range(0, n, 2)]
    return [f"v_pk_mul_f32 {vr(r+i,2)}, {vr(r+i,2)}, s[{sC}:{sC+1}] op_sel_hi:[1,0]" for i in range(0, n, 2)]
def prep_parts():
    H = v.H; X = v.X; Y = v.Y
    D0 = vr(Y, 16); D1 = vr(H + 16, 16)
    p = {}
    p["qw"] = [f"ds_write_b16 {vr(v.diagW)}, {vr(v.Q)}"] + qshift() + [f"v_add_u32 {vr(v.biasA)}, 0x200, {vr(v.biasA)}"]
    p["rb"] = [f"ds_read_b128 {vr(v.BR + 4*i, 4)}, {vr(v.biasA)} offset:{32*i}" for i in range(4)]
    p["ptr"] = [f"v_add_u32 {vr(v.aDiag+f)}, s{sDelta}, {vr(v.aDiag+f)}" for f in range(2)] + \
               [f"s_sub_u32 s{sDelta}, 0, s{sDelta}", f"v_add_u32 {vr(v.diagW)}, s{sDelta}, {vr(v.diagW)}"]
    return p

dm = []
for t in range(4):
    dm += ["\n".join(dma_a(IX[t], sHist, "0", t, NT_HIST)), "\n".join(dma_b(IX[t], sHist, "0", t, NT_HIST))]
DPOS = [int(x) for x in OPT("dpos", "0,1,10,14,20,24,28,32").split(",")]
_mf = [0]
def emit_m(lst):
    for x in lst:
        emit([x])
        if x.startswith("v_mfma"):
            for j in range(8):
                if DPOS[j] == _mf[0]: emit([dm[j]])
            _mf[0] += 1
Dc = [f"{MF32} {vr(AC,16)}, {vr(v.H + 4*ks, 4)}, {vr(TFR + 4*ks, 4)}, {'0' if ks == 0 else vr(AC,16)}" for ks in range(8)]
Db = [f"{MF32} {vr(AC,16)}, {vr(v.H + 4*ks, 4)}, {vr(TFR + 4*ks, 4)}, {vr(AC,16)}" for ks in range(8)]
assert max(DPOS[:2]) < 8 and max(DPOS) < 38
emit_m(Dc)
ts("dma4")
a.begin_auto()
Wd = tr_list(v.WD, 4, aW1b)
Wb = lambda T: tr_list(v.H, 4, aW0, [T])
B1F = v.WAC + 48
b1u = []
for i in range(4):
    b1u += [f"v_lshlrev_b32 {vr(B1F+4*i)}, 16, {vr(B1R+2*i)}", f"v_and_b32 {vr(B1F+4*i+1)}, 0xffff0000, {vr(B1R+2*i)}",
            f"v_lshlrev_b32 {vr(B1F+4*i+2)}, 16, {vr(B1R+2*i+1)}", f"v_and_b32 {vr(B1F+4*i+3)}, 0xffff0000, {vr(B1R+2*i+1)}"]
bsub = [f"v_sub_f32 {vr(AC+i)}, {vr(B1F+i)}, {vr(AC+i)}" for i in range(16)]
w0, w1, w2, w3 = wac(0), wac(1), wac(2), wac(3)
emit_m([w0[0]] + Wd[0:4] + b1u[0:4] + [w0[1]] + Wd[4:8] + b1u[4:8] + [w0[2]] + Wd[8:12] + b1u[8:12] + [w0[3]] + Wd[12:16] + b1u[12:16])
emit_m([w1[0]] + Wb(0) + bsub[0:4] + [w1[1]] + bsub[4:8] + [w1[2]] + bsub[8:12] + [w1[3]] + bsub[12:16])
s0, s1, s2, s3 = [scale(v.WAC + 16*T, 16) for T in range(4)]
emit_m([w2[0]] + Wb(1) + s0[0:2] + [w2[1]] + s0[2:4] + [w2[2]] + s0[4:6] + [w2[3]] + s0[6:8])
X = v.X; Y = v.Y; H = v.H
emit_m([w3[0]] + Wb(2) + s1[0:2] + [w3[1]] + s1[2:4] + [w3[2]] + s1[4:6] + [w3[3]] + Wb(3) + s1[6:8])
emit([f"ds_read_b128 {vr(v.WE + 8*T + 4*f, 4)}, {vr(v.aDiag+f)} offset:{528*T}" for T in range(4) for f in range(2)])
ts("wac")
emit_m([Db[0]] + s2[0:2] + [Db[1]] + s2[2:4] + [Db[2]] + s2[4:6] + [Db[3]] + s2[6:8])
emit_m([Db[4]] + s3[0:2] + [Db[5]] + s3[2:4] + [Db[6]] + s3[4:6] + [Db[7]] + s3[6:8])
ts("chain2")
PD = [Y, X, H, H + 16]
def P(T):
    D = vr(PD[T], 16)
    return [f"{MF32} {D}, {vr(v.WE+8*T,4)}, {vr(v.WD+8*T,4)}, {vr(v.WAC+16*T,16)}",
            f"{MF32} {D}, {vr(v.WE+8*T+4,4)}, {vr(v.WD+8*T+4,4)}, {D}"]
def cv(T):
    return [f"v_cvt_pk_bf16_f32 {vr(v.WE + 8*T + i)}, {vr(PD[T]+2*i)}, {vr(PD[T]+2*i+1)}" for i in range(8)]
p = prep_parts()
a(f"s_lshl_b32 s{sB2v}, s{sB2v}, 16")
a(f"s_cmp_eq_u32 s{sW}, 0")
a(f"s_cselect_b32 s{sB2v}, s{sB2v}, 0")
sc = scale(AC, 16)
bw = [f"ds_write_b128 {vr(tBW)}, {vr(AC+4*i,4)} offset:{32*i}" for i in range(4)]
zD = [f"v_mov_b32 {vr(v.D2+i)}, 0" for i in range(8)] + [f"v_mov_b32 {vr(v.D3+i)}, 0" for i in range(4)]
emit_m([P(0)[0]] + p["qw"][:-1] + [P(0)[1]] + p["ptr"] + zD[:4] + [P(1)[0]] + zD[4:] + [P(1)[1]])
emit_m(sc[:2] + bw[:1] + [P(2)[0]] + sc[2:4] + bw[1:2] + [P(2)[1]] + sc[4:6] + bw[2:3] + [P(3)[0]] + sc[6:8] + bw[3:4] + [P(3)[1]])
emit(cv(0))
a("s_waitcnt lgkmcnt(0)")
emit(p["rb"]); emit(p["qw"][-1:])
emit(cv(1))
a(f"v_mov_b32 {vr(v.b2c)}, s{sB2v}")
a(f"v_mov_b32 {vr(v.b2c+1)}, s{sB2v}")
for i in range(16): a(f"v_mov_b32 {vr(v.Y+i)}, 0")
emit(cv(2) + cv(3))
a.end_auto()
ts("prep0")
a(f"v_mov_b32 {vr(v.m0)}, 0")
a("s_waitcnt vmcnt(6) lgkmcnt(0)")
a("s_barrier")
ts("B4")
dma(v.m1, sHist, "0", 4, NT_HIST)
a(f"v_mov_b32 {vr(v.m1)}, 0")
if PROF:
    for r in (97, 98, 99): a(f"s_mov_b32 s{r}, 0")
if FL("ilog"):
    a("s_memtime s[80:81]"); a("s_waitcnt lgkmcnt(0)"); a("s_mov_b32 s82, s80"); a("s_mov_b32 s84, 0")
    a(f"s_mov_b32 s86, s{sFIRST}"); a(f"s_mov_b32 s87, s{sLAST}")
    for r in range(56, 68): a(f"s_mov_b32 s{r}, 0")
a(f"s_mov_b32 s{sTgtR}, 0")
sOne = 68
a(f"s_mov_b32 s{sOne}, 1.0")
a(f"s_mov_b32 s{sOne+1}, 1.0")

def sig_stream():
    Y = v.Y
    e = [f"v_exp_f32 {vr(Y+i)}, {vr(Y+i)}" for i in range(16)]
    d = [f"v_add_f32 {vr(Y+i)}, 1.0, {vr(Y+i)}" for i in range(16)]
    if FL("pk"): d = [f"v_pk_add_f32 {vr(Y+i,2)}, {vr(Y+i,2)}, s[{sOne}:{sOne+1}]" for i in range(0, 16, 2)]
    r = [f"v_rcp_f32 {vr(Y+i)}, {vr(Y+i)}" for i in range(16)]
    c = [f"v_cvt_pk_bf16_f32 {vr(Y+k)}, {vr(Y+2*k)}, {vr(Y+2*k+1)}" for k in range(8)]
    return e + d + r[:8] + c[:4] + r[8:] + c[4:]

def score_mfma():
    Y = v.Y
    S1 = f"{MF16} {vr(v.D3,4)}, {vr(v.A3,4)}, {vr(Y,4)}, {vr(v.b2c,4)}"
    S2 = f"{MF16} {vr(v.D3,4)}, {vr(v.A3+4,4)}, {vr(Y+4,4)}, {vr(v.D3,4)}"
    if FL("noS"): S1 = S2 = "; skip"
    return [S1, S2]

def fin(par_off, addr=None):
    return [f"v_mul_f32 {vr(v.D3)}, {vr(v.D3)}, {vr(v.m0)}",
            f"v_mul_f32 {vr(v.D3+1)}, {vr(v.D3+1)}, {vr(v.m1)}",
            f"v_cvt_pk_bf16_f32 {vr(v.D3)}, {vr(v.D3)}, {vr(v.D3+1)}",
            f"ds_write_b32 {vr(v.partW if addr is None else addr)}, {vr(v.D3)} offset:{par_off}"]

def epilogue():
    D2 = v.D2; T = v.H
    for dt in range(2):
        a(f"v_add_f32 {vr(T+2*dt)}, {vr(D2+4*dt)}, {vr(D2+4*dt+1)}")
        a(f"v_add_f32 {vr(T+2*dt+1)}, {vr(D2+4*dt+2)}, {vr(D2+4*dt+3)}")
    for dt in range(2):
        a(f"v_add_f32 {vr(T+2*dt)}, {vr(T+2*dt)}, {vr(T+2*dt+1)}")
    for i in range(8):
        a(f"v_mov_b32 {vr(D2+i)}, 0")
    a(f"v_cndmask_b32 {vr(T)}, {vr(T)}, {vr(T+2)}, {sp(sSel)}")
    a(f"v_cvt_pk_bf16_f32 {vr(T)}, {vr(T)}, {vr(T)}")
    a(f"buffer_store_short {vr(T)}, {vr(v.outA)}, {srd(sOut)}, 0 offen")
    a(f"s_add_u32 s{sOut}, s{sOut}, 256")
    a(f"s_addc_u32 s{sOut+1}, s{sOut+1}, 0")

def pieces(u, grp):
    H = v.H; X = v.X; Y = v.Y
    c = {}
    c["Rh"] = [f"ds_read_b128 {vr(H+4*ks,4)}, {vr(v.aH + (ks&3))} offset:{u*8192 + 4096*(ks>>2)}" for ks in range(8)]
    c["Ri"] = f"ds_read_u16 {vr(v.idx)}, {vr(v.idxA)} offset:{64*(u+6)}"
    mo = 64 * (u + 1)
    c["Rm"] = [f"ds_read_u16_d16_hi {vr(v.m0)}, {vr(v.maskA)} offset:{mo}",
               f"ds_read_u16_d16_hi {vr(v.m1)}, {vr(v.maskA)} offset:{mo+32}"]
    c["fin"] = fin(((u - 1) & 1) * 256)
    c["G"] = [f"{MF32} {vr(Y,16)}, {vr(v.WE+4*ks,4)}, {vr(H+4*ks,4)}, {vr(v.BR,16) if ks == 0 else vr(Y,16)}" for ks in range(8)]
    c["ix"] = f"v_lshl_add_u32 {vr(v.tmp)}, {vr(v.idx)}, 8, {vr(v.lane_off)}"
    c["da"] = dma_a(v.tmp, sHist, "0", (u+5) & 7, NT_HIST)
    c["db"] = dma_b(v.tmp, sHist, "0", (u+5) & 7, NT_HIST)
    slot = (u - 2) & 7
    c["Rt"] = [f"ds_read_b64_tr_b16 {vr(X + 4*dt + 2*du, 2)}, {vr(v.aT + 2*du + dt)} offset:{slot*8192}" for du in range(2) for dt in range(2)]
    c["Rp"] = f"ds_read_b128 {vr(X+8,4)}, {vr(v.partR)} offset:{(u&1)*256}"
    c["G2"] = [f"{MF16} {vr(v.D2+4*dt,4)}, {vr(X+8,4)}, {vr(X+4*dt,4)}, {vr(v.D2+4*dt,4)}" for dt in range(2)]
    c["S"] = score_mfma()
    GAP = int(OPT("gap", "-1"))
    if GAP >= 0:
        c["G"] = [x + f"\ns_nop {GAP}" for x in c["G"]]
    N = "; skip"
    if FL("nog2"): c["Rt"] = [N]*4; c["Rp"] = N; c["G2"] = [N]*2
    if FL("nofin"): c["fin"] = [N]*4
    if FL("noH"): c["Rh"] = [N]*8
    return c

PRIO = not FL("noprio")
def prio(n): return [f"s_setprio {n}"] if PRIO else []
def arrive():
    return ["s_mov_b64 exec, 1", f"ds_inc_u32 {vr(v.partR)}, {vr(v.partR)} offset:{CTR}", "s_mov_b64 exec, -1"]
def poll_rd(): return [f"ds_read_b32 {vr(v.tmp)}, {vr(v.partR)} offset:{CTR}"]
def poll_chk(target):
    return ["s_waitcnt lgkmcnt(0)", f"v_readfirstlane_b32 s{sCv}, {vr(v.tmp)}", f"s_cmp_ge_u32 s{sCv}, s{sTgtC}",
            f"s_cbranch_scc0 {target}"]
def spin(label, back):
    a.label(label)
    emit(poll_rd() + ["s_waitcnt lgkmcnt(0)", f"v_readfirstlane_b32 s{sCv}, {vr(v.tmp)}", f"s_cmp_ge_u32 s{sCv}, s{sTgtC}",
         f"s_cbranch_scc0 {label}"])
    if back: a(f"s_branch {back}")
HPRE = FL("hpre")
def with_sync(st, u, first, pr):
    st = list(st)
    RAISE = int(OPT("raise", "24"))
    if not HPRE:
        RD = len(st) - int(OPT("rdback", "10")); CHK = len(st); Rh = []
    else:
        Rh = pieces((u + 1) & 7, 0)["Rh"]
        RD = int(OPT("rdpos", "16")); CHK = int(OPT("chk", "32"))
        if first: RD, CHK = len(st) - 30, len(st) - 8
    pre, post = st[:CHK], st[CHK:]
    pre = pre[:RD] + poll_rd() + pre[RD:]
    if RAISE >= 0: pre = pre[:RAISE] + prio(pr[2]) + pre[RAISE:]
    if first:
        post = post + Rh
    else:
        out = []; q = list(Rh)
        for x in post:
            out.append(x)
            if q and x.startswith("v_rcp"): out.append(q.pop(0))
        post = out + q
    return pre, post

def m_phase(u):
    c = pieces(u, 0); G, Rh, Rt, S, Z = c["G"], c["Rh"], c["Rt"], c["S"], c["G2"]
    da, db, fin_ = c["da"], c["db"], c["fin"]
    tg = [f"s_add_u32 s{sTgtR}, s{sTgtR}, 4", f"s_bitcmp1_b32 s{sEND}, {u}", f"s_cselect_b32 s{sTgtC}, -1, s{sTgtR}"]
    s = Rh[:4] + [S[0]] + Rh[4:6] + [S[1]] + Rh[6:]
    ORD = OPT("mord", "a")
    if ORD == "a":
        s += [c["ix"], da[0], c["Rp"], da[1], G[0]] + fin_ + [G[1], db[0], Rt[0], db[1], Rt[2], G[2], Rt[1], Rt[3], c["Ri"], G[3]]
        s += c["Rm"] + tg + [G[4], G[5], G[6], G[7], Z[0], Z[1]]
    elif ORD == "b":
        s += [c["Rp"], Rt[0], G[0]] + fin_ + [G[1], c["ix"], da[0], Rt[2], da[1], G[2], db[0], Rt[1], db[1], Rt[3], G[3]]
        s += c["Rm"] + [c["Ri"], G[4]] + tg + [G[5], G[6], G[7], Z[0], Z[1]]
    elif ORD == "c":
        s += [c["ix"], da[0], c["Rp"], da[1], db[0], Rt[0], db[1], G[0]] + fin_ + [G[1], Rt[2], Rt[1], Rt[3], G[2], c["Ri"]] + c["Rm"] + [G[3]]
        s += tg + [G[4], G[5], G[6], G[7], Z[0], Z[1]]
    return s

def v_prep(vp):
    H = v.H; X = v.X; Y = v.Y; BR = v.BR
    D0 = vr(H, 16); D1 = vr(H + 16, 16)
    e = [f"v_exp_f32 {vr(Y+i)}, {vr(Y+i)}" for i in range(16)]
    d = [f"v_add_f32 {vr(Y+i)}, 1.0, {vr(Y+i)}" for i in range(16)]
    r = [f"v_rcp_f32 {vr(Y+i)}, {vr(Y+i)}" for i in range(16)]
    c = [f"v_cvt_pk_bf16_f32 {vr(Y+k)}, {vr(Y+2*k)}, {vr(Y+2*k+1)}" for k in range(8)]
    fr = lambda T, f: (X if T < 2 else BR) + 8 * (T & 1) + 4 * f
    rd = [f"ds_read_b128 {vr(fr(T, f), 4)}, {vr(v.aDiag+f)} offset:{528*T}" for T in range(4) for f in range(2)]
    def P(T):
        D = D0 if T % 2 == 0 else D1
        m = [f"{MF32} {D}, {vr(fr(T,0),4)}, {vr(v.WD+8*T,4)}, {vr(v.WAC+16*T,16)}",
             f"{MF32} {D}, {vr(fr(T,1),4)}, {vr(v.WD+8*T+4,4)}, {D}"]
        if FL("pprio"): m = [f"s_setprio 3\n{x}\ns_setprio {vp}" for x in m]
        return m
    def cv(T):
        D = H if T % 2 == 0 else H + 16
        return [f"v_cvt_pk_bf16_f32 {vr(v.WE + 8*T + i)}, {vr(D+2*i)}, {vr(D+2*i+1)}" for i in range(8)]
    p = prep_parts()
    P0, P1, P2, P3 = P(0), P(1), P(2), P(3)
    s = e[0:8] + ["s_waitcnt lgkmcnt(4)"]
    s += [P0[0]] + e[8:11] + [P0[1]] + e[11:14] + [P1[0]] + e[14:16] + d[0:2] + [P1[1]] + d[2:16]
    s += cv(0) + cv(1) + r[:8] + c[:4]
    s += ["s_waitcnt lgkmcnt(0)", P2[0]] + r[8:11] + [P2[1]] + r[11:14] + [P3[0]] + r[14:16] + [P3[1]]
    s += p["rb"] + c[4:] + p["qw"][1:] + p["ptr"] + cv(2) + cv(3)
    return s

def diag_reads():
    X = v.X; BR = v.BR
    fr = lambda T, f: (X if T < 2 else BR) + 8 * (T & 1) + 4 * f
    rd = [f"ds_read_b128 {vr(fr(T, f), 4)}, {vr(v.aDiag+f)} offset:{528*T}" for T in range(4) for f in range(2)]
    return rd[:4], rd[4:], f"ds_write_b16 {vr(v.diagW)}, {vr(v.Q)}"

INLOOP = True
def ilog(u):
    if PROF:
        emit(pm(3)); a("s_waitcnt lgkmcnt(0)"); emit(pacc())
    if FL("ilog"):
        a("s_memtime s[80:81]"); a("s_waitcnt lgkmcnt(0)")
        a("s_sub_u32 s83, s80, s82"); a("s_mov_b32 s82, s80")
        a("s_min_u32 m0, s84, 11")
        if u % 2 == 0:
            a("s_movreld_b32 s56, s83")
        else:
            a("s_movrels_b32 s85, s56"); a("s_lshl_b32 s83, s83, 16"); a("s_or_b32 s85, s85, s83")
            a("s_movreld_b32 s56, s85"); a("s_add_u32 s84, s84, 1")

def vsync(st, pr):
    st = list(st)
    RAISE = int(OPT("raise", "24"))
    k = len(st) - int(OPT("rdback", "10"))
    st = st[:k] + poll_rd() + st[k:]
    if RAISE >= 0: st = st[:RAISE] + prio(pr[2]) + st[RAISE:]
    return st

def loop(L, pr):
    VMW = "s_waitcnt lgkmcnt(0)" if FL("novm") else "s_waitcnt vmcnt(8)"
    emit(prio(pr[0]))
    for u in range(8):
        a.label(f"{L}b{u}")
        emit(pm(0))
        a.begin_auto()
        emit(m_phase(u))
        a.end_auto()
        a(f"s_bitcmp1_b32 s{sFIRST}, {u+1}")
        a(f"s_cbranch_scc1 {L}first{u}")
        a(f"s_bitcmp1_b32 s{sLAST}, {u}")
        a(VMW)
        emit(arrive())
        a(f"s_cbranch_scc1 {L}epi{u}")
        a.label(f"{L}done{u}")
        emit(pm(1))
        emit(prio(pr[1]))
        emit(vsync(sig_stream(), pr))
        a.label(f"{L}vj{u}")
        emit(pm(2))
        if u == 7:
            a(f"v_add_u32 {vr(v.idxA)}, 512, {vr(v.idxA)}")
            a(f"v_add_u32 {vr(v.maskA)}, 512, {vr(v.maskA)}")
            a(f"s_lshr_b64 {sp(sFIRST)}, {sp(sFIRST)}, 8")
            a(f"s_lshr_b64 {sp(sLAST)}, {sp(sLAST)}, 8")
            a(f"s_lshr_b64 {sp(sEND)}, {sp(sEND)}, 8")
        a("s_waitcnt lgkmcnt(0)")
        a(f"v_readfirstlane_b32 s{sCv}, {vr(v.tmp)}")
        emit(prio(pr[0]) or ["s_nop 0"])
        a(f"s_cmp_ge_u32 s{sCv}, s{sTgtC}")
        a(f"s_cbranch_scc0 {L}slow{u}")
        ilog(u)
        if u == 7: a(f"s_branch {L}b0")
    for u in range(8):
        a.label(f"{L}first{u}")
        r01, r23, qw = diag_reads()
        emit(r01 + [qw])
        a(f"s_bitcmp1_b32 s{sLAST}, {u}")
        a(VMW)
        emit(arrive())
        emit(r23)
        a(f"s_cbranch_scc1 {L}fepi{u}")
        a.label(f"{L}fdone{u}")
        emit(prio(pr[1]))
        a.begin_auto()
        emit(["s_waitcnt lgkmcnt(6)" if False else "; skip"] + vsync(v_prep(pr[1]), pr))
        a.end_auto()
        a(f"s_branch {L}vj{u}")
    for u in range(8):
        a.label(f"{L}epi{u}")
        epilogue()
        a(f"s_branch {L}done{u}")
        a.label(f"{L}fepi{u}")
        epilogue()
        a(f"s_branch {L}fdone{u}")
    for u in range(8):
        a.label(f"{L}slow{u}")
        a(f"s_cmp_eq_u32 s{sTgtC}, -1")
        a(f"s_cbranch_scc1 {L}stub{u}")
        a.label(f"{L}spin{u}")
        emit(poll_rd() + ["s_waitcnt lgkmcnt(0)", f"v_readfirstlane_b32 s{sCv}, {vr(v.tmp)}",
             f"s_cmp_ge_u32 s{sCv}, s{sTgtC}", f"s_cbranch_scc0 {L}spin{u}"])
        a(f"s_branch {L}b{(u+1)&7}")
    for u in range(8):
        a.label(f"{L}stub{u}")
        a(f"s_mov_b32 s{sSb}, {((u-1)&7)*8192}")
        a(f"s_mov_b32 s{sSc}, {u*8192}")
        a(f"s_mov_b32 s{sPb}, {((u+1)&1)*256}")
        a(f"s_mov_b32 s{sPc}, {(u&1)*256}")
        a(f"s_lshr_b64 {sp(sLAST)}, {sp(sLAST)}, {u+1 if u < 7 else 0}") if u < 7 else None
        a(f"s_branch L_tail")
sSb, sSc, sMo, sPb, sPc = [sT0 + i for i in range(5)]
PA = [int(x) for x in OPT("pa", "302")]
PB = [int(x) for x in OPT("pb", "302")]
TWO = PA != PB
if TWO:
    a(f"s_cmp_eq_u32 s{sFav}, 1")
    a("s_cbranch_scc1 LA_entry")
    loop("LB_", PB)
    a.label("LA_entry")
    loop("LA_", PA)
else:
    loop("L_", PA)
INLOOP = False

def tail_g2(sS, part_reg):
    H = v.H; X = v.X
    for k in range(4): a(f"v_add_u32 {vr(H+20+k)}, s{sS}, {vr(v.aT+k)}")
    for du in range(2):
        for dt in range(2):
            a(f"ds_read_b64_tr_b16 {vr(X + 4*dt + 2*du, 2)}, {vr(H+20 + 2*du + dt)}")
    a(f"ds_read_b128 {vr(X+8,4)}, {vr(part_reg)}")
    for dt in range(2):
        a(f"{MF16} {vr(v.D2+4*dt,4)}, {vr(X+8,4)}, {vr(X+4*dt,4)}, {vr(v.D2+4*dt,4)}")
H = v.H
a.label("L_tail")
a(f"s_mov_b32 s{sTgtC}, s{sTgtR}")
emit(prio(2))
spin("L_tspin0", None)
a.begin_auto()
emit(score_mfma())
a(f"v_add_u32 {vr(H+24)}, s{sPc}, {vr(v.partW)}")
emit(fin(0, H+24))
a(f"v_add_u32 {vr(H+26)}, s{sPb}, {vr(v.partR)}")
tail_g2(sSb, H+26)
a.end_auto()
a(f"s_bitcmp1_b32 s{sLAST}, 0")
a(f"s_cbranch_scc0 L_t1")
epilogue()
a.label("L_t1")
a(f"s_add_u32 s{sTgtC}, s{sTgtC}, 4")
emit(arrive())
spin("L_tspin", None)
a.begin_auto()
a(f"v_add_u32 {vr(H+26)}, s{sPc}, {vr(v.partR)}")
tail_g2(sSc, H+26)
a.end_auto()
epilogue()
if DEBUG_TS:
    ts(5)
    a(f"s_load_dwordx2 {sp(sTgt)}, s[0:1], 72")
    a("s_waitcnt vmcnt(0) lgkmcnt(0)")
    a(f"s_mov_b32 s{sTgt+2}, 0x100000")
    a(f"s_mov_b32 s{sTgt+3}, 0x00020000")
    a(f"s_lshl_b32 s{sT0+2}, s2, 2")
    a(f"s_add_u32 s{sT0+2}, s{sT0+2}, s{sW}")
    a(f"s_lshl_b32 s{sT0+2}, s{sT0+2}, 5")
    a(f"v_mov_b32 v0, s{sT0+2}")
    for k in range(6):
        a(f"v_mov_b32 v{4+k}, s{TSREG[k]}")
    a(f"s_lshl_b32 s3, s3, 8")
    a(f"s_or_b32 s3, s3, s{sNT}")
    a(f"v_mov_b32 v10, s3")
    a(f"s_getreg_b32 s{sT0+3}, hwreg(HW_REG_HW_ID)")
    a(f"s_getreg_b32 s{sT0+4}, hwreg(HW_REG_XCC_ID)")
    a(f"s_lshl_b32 s{sT0+4}, s{sT0+4}, 16")
    a(f"s_and_b32 s{sT0+3}, s{sT0+3}, 0xffff")
    a(f"s_or_b32 s{sT0+3}, s{sT0+3}, s{sT0+4}")
    a(f"v_mov_b32 v11, s{sT0+3}")
    a("s_mov_b64 exec, 1")
    a(f"buffer_store_dwordx4 v[4:7], v0, {srd(sTgt)}, 0 offen")
    a(f"buffer_store_dwordx4 v[8:11], v0, {srd(sTgt)}, 0 offen offset:16")
    if FL("ilog"):
        a("v_lshlrev_b32 v0, 1, v0"); a("v_add_u32 v0, 0x40000, v0")
        for k in range(12): a(f"v_mov_b32 v{12+k}, s{56+k}")
        a("v_mov_b32 v24, s86"); a("v_mov_b32 v25, s87")
        for k in range(4): a(f"buffer_store_dwordx4 v[{12+4*k}:{15+4*k}], v0, {srd(sTgt)}, 0 offen offset:{16*k}")
a("s_waitcnt vmcnt(0)")
a.label("L_end")
a("s_endpgm")

body_txt = a.finalize()
hdr = open("cdna_kernels/" + NAME + ".s.ref").read()
head = hdr[:hdr.index("; @launch")]
out = head + f"""; @launch grid=(256,1,1) block=(512,1,1) lds={LDS_BYTES}
.amdgcn_target "amdgcn-amd-amdhsa--gfx950"
.text
.globl {NAME}_kernel
.p2align 8
.type {NAME}_kernel,@function
{NAME}_kernel:
{body_txt}
.section .rodata,"a"
.p2align 6
.amdhsa_kernel {NAME}_kernel
  .amdhsa_next_free_vgpr {NVGPR}
  .amdhsa_next_free_sgpr 102
  .amdhsa_accum_offset 256
  .amdhsa_group_segment_fixed_size 0
  .amdhsa_kernarg_size 80
  .amdhsa_user_sgpr_count 2
  .amdhsa_user_sgpr_kernarg_segment_ptr 1
  .amdhsa_system_sgpr_workgroup_id_x 1
.end_amdhsa_kernel
"""
outp = [x for x in sys.argv[1:] if not x.startswith("--")]
path = outp[0] if outp else "cdna_kernels/" + NAME + ".s"
open(path, "w").write(out)
print("wrote", path, "lines", out.count("\n"), "nops", a.padded)
```

```python
import sys
from asmlib import Asm

NAME = "standalone__sequential_behavior_din__recsys"
DEBUG_TS = "--ts" in sys.argv
FL = lambda x: ("--" + x) in sys.argv
def OPT(name, default):
    for x in sys.argv:
        if x.startswith("--" + name + "="): return x.split("=", 1)[1]
    return default

MISC0 = 131072
IDX = 0
MASKL = 3584
PART = 7232
BIAS = 8000
DIAG = 12096
CNT = 16320
LDS_BYTES = 163840
assert CNT + 32 <= 16384

class V: pass
v = V()
def vr(a, n=1):
    return f"v{a}" if n == 1 else f"v[{a}:{a+n-1}]"
v.aH = 0; v.aT = 4; v.idxA = 8; v.idx = 9; v.lane_off = 10; v.maskA = 11
v.m0 = 12; v.m1 = 13; v.partW = 14; v.partR = 15; v.aDiag = 16; v.diagW = 18
v.biasA = 19; v.outA = 20; v.tmp = 21; v.b2c = 22; v.Q = 24; v.D3 = 28; v.D2 = 32
v.A3 = 40; v.BR = 48; v.Y = 64; v.X = 80; v.Y0 = 64; v.Y1 = 80; v.H = 96; v.WAC = 128; v.WD = 192; v.WE = 224
NVGPR = 256

sHist = 4; sW1 = 8; sOut = 12; sTgt = 16; sMask = 20; sB1 = 24; sW2 = 28; sB2 = 32
sEND = 34; sW = 36; sWoff = 37; sG = 38; sNT = 39; sFIRST = 40; sLAST = 42
sDelta = 44; sMB = 45; sSel = 46; sC = 48; sB2v = 49
sT0 = 50
sP = 70
sBal = 80
sRet = 94
sTgtC = 93
sTgtR = 92
sCv = 55
sFav = 38
CTR = 512

a = Asm()
TSREG = {0: 96, 1: 97, 2: 98, 3: 99, 4: 100, 5: 101}
TSMAP = dict(zip(OPT("tsmap", "B1,B2a,B2b,B4").split(","), (1, 2, 3, 4)))
def ts(k):
    if not DEBUG_TS: return
    name = k
    if isinstance(k, str) and k not in TSMAP and k != "B4": return
    slot = TSMAP.get(k, None) if isinstance(k, str) else k
    if slot is not None:
        a(f"{'s_memtime' if FL('tscyc') else 's_memrealtime'} s[{sT0+18}:{sT0+19}]")
        a("s_waitcnt lgkmcnt(0)")
        a(f"s_mov_b32 s{TSREG[slot]}, s{sT0+18}")
    if name == "B4" or name == 5:
        a(f"s_memtime s[{sT0+18}:{sT0+19}]")
        a("s_waitcnt lgkmcnt(0)")
        if name == "B4": a(f"s_mov_b32 s3, s{sT0+18}")
        else: a(f"s_sub_u32 s3, s{sT0+18}, s3")

PROF = FL("prof")
def pm(k):
    return [f"s_memtime s[{80+2*k}:{81+2*k}]"] if PROF else []
def pacc():
    if not PROF: return []
    return ["s_sub_u32 s91, s82, s80", "s_add_u32 s97, s97, s91", "s_sub_u32 s91, s84, s82", "s_add_u32 s98, s98, s91",
            "s_sub_u32 s91, s86, s84", "s_add_u32 s99, s99, s91"]
def srd(r): return f"s[{r}:{r+3}]"
def sp(r): return f"s[{r}:{r+1}]"

def dma_a(voff, srdreg, soff, slot, nt):
    f = " nt" if nt else ""
    return [f"s_add_u32 m0, s{sWoff}, {slot*8192}",
            f"buffer_load_dwordx4 {vr(voff)}, {srd(srdreg)}, {soff} offen{f} lds"]
def dma_b(voff, srdreg, soff, slot, nt):
    f = " nt" if nt else ""
    return [f"s_add_u32 m0, s{sWoff}, {slot*8192 + 4096 - 128}",
            f"buffer_load_dwordx4 {vr(voff)}, {srd(srdreg)}, {soff} offen offset:128{f} lds"]
INLOOP = False
def emit(lst):
    for x in [y for z in lst for y in z.split("\n")]:
        if INLOOP and FL("nodma") and x.startswith("buffer_load"): continue
        if INLOOP and FL("nosig") and x.startswith(("v_exp", "v_rcp", "v_add_f32")): continue
        if INLOOP and FL("nog1") and x.startswith("v_mfma_f32_32x32"): continue
        if x.startswith("; skip"): continue
        a(x)
def dma(voff, srdreg, soff, slot, nt):
    emit(dma_a(voff, srdreg, soff, slot, nt)); emit(dma_b(voff, srdreg, soff, slot, nt))

MF32 = "v_mfma_f32_32x32x16_bf16"
MF16 = "v_mfma_f32_16x16x32_bf16"
NT_HIST = not FL("nont")

a("s_cmp_ge_u32 s2, 256")
a("s_cbranch_scc1 L_end")
ts(0)
a(f"s_load_dwordx2 {sp(sMask)}, s[0:1], 16")
a(f"s_load_dwordx2 {sp(sW1)}, s[0:1], 24")
a(f"s_load_dwordx2 {sp(sTgt)}, s[0:1], 0")
a(f"s_load_dwordx2 {sp(sB1)}, s[0:1], 32")
a(f"s_load_dwordx2 {sp(sW2)}, s[0:1], 40")
a(f"s_load_dwordx2 {sp(sB2)}, s[0:1], 48")
a(f"s_load_dwordx2 {sp(sHist)}, s[0:1], 8")
a(f"s_load_dwordx2 {sp(sOut)}, s[0:1], 56")
tLane, tHi, tM, tQ, tN4, tA, tB, tC, tD, tE, tF, tG = [v.BR + i for i in range(12)]
a(f"v_lshrrev_b32 {vr(tA)}, 6, v0")
a(f"v_and_b32 {vr(tLane)}, 63, v0")
a(f"v_readfirstlane_b32 s{sT0}, {vr(tA)}")
a(f"v_and_b32 v0, 255, v0")
a(f"v_lshrrev_b32 {vr(tHi)}, 5, {vr(tLane)}")
a(f"v_and_b32 {vr(tM)}, 31, {vr(tLane)}")
a(f"v_lshrrev_b32 {vr(tQ)}, 4, {vr(tLane)}")
a(f"v_and_b32 {vr(tN4)}, 15, {vr(tLane)}")
a(f"s_and_b32 s{sW}, s{sT0}, 3")
a(f"s_lshr_b32 s{sG}, s{sT0}, 2")
a(f"s_lshl_b32 s2, s2, 1")
a(f"s_add_u32 s2, s2, s{sG}")
a(f"s_lshl_b32 s{sWoff}, s{sW}, 10")
a(f"s_lshl_b32 s{sT0}, s{sG}, 16")
a(f"s_add_u32 s{sWoff}, s{sWoff}, s{sT0}")
a(f"s_lshl_b32 s{sMB}, s{sG}, 14")
a(f"s_add_u32 s{sMB}, s{sMB}, {MISC0}")
a(f"s_mov_b32 s{sC}, 0xBFB8AA3B")
a(f"v_lshlrev_b32 {vr(tA)}, 3, {vr(tLane)}")
a(f"s_mul_i32 s{sT0}, s{sW}, 800")
a(f"v_add_u32 {vr(tA)}, s{sT0}, {vr(tA)}")
a(f"v_mov_b32 {vr(tB)}, 0x10000")
a(f"v_cmp_gt_u32 vcc, 50, {vr(tLane)}")
a(f"v_cndmask_b32 {vr(tA)}, {vr(tB)}, {vr(tA)}, vcc")
a(f"v_lshrrev_b32 {vr(tB)}, 3, {vr(tLane)}")
a(f"s_lshl_b32 s{sT0}, s{sW}, 3")
a(f"v_add_u32 {vr(tB)}, s{sT0}, {vr(tB)}")
a(f"v_and_b32 {vr(tD)}, 7, {vr(tLane)}")
a(f"v_and_b32 {vr(tC)}, 2, {vr(tB)}")
a(f"v_lshlrev_b32 {vr(tC)}, 1, {vr(tC)}")
a(f"v_xor_b32 {vr(tC)}, {vr(tC)}, {vr(tD)}")
a(f"v_lshlrev_b32 {vr(tC)}, 4, {vr(tC)}")
v.wv = v.Q
a(f"v_lshl_add_u32 {vr(v.wv)}, {vr(tB)}, 8, {vr(tC)}")
a(f"s_mul_i32 s{sT0}, s2, 3200")
a("s_waitcnt lgkmcnt(0)")
a(f"s_add_u32 s{sMask}, s{sMask}, s{sT0}")
a(f"s_addc_u32 s{sMask+1}, s{sMask+1}, 0")
a(f"s_mov_b32 s{sMask+2}, 3200")
a(f"s_mov_b32 s{sMask+3}, 0x00020000")
ts("karg")
MK = v.Y1
a(f"buffer_load_dwordx2 {vr(MK,2)}, {vr(tA)}, {srd(sMask)}, 0 offen")
a(f"buffer_load_dwordx2 {vr(MK+2,2)}, {vr(tA)}, {srd(sMask)}, 0 offen offset:400")
a(f"s_load_dword s{sB2v}, {sp(sB2)}, 0")
a(f"s_mov_b32 s{sW1+2}, 131072")
a(f"s_mov_b32 s{sW1+3}, 0x00020000")
sWs = 79; sWb = 3
a(f"s_lshl_b32 s{sWb}, s{sG}, 16")
def wdma(s):
    return [[f"s_add_u32 s{sWs}, s{sWb}, {s*8192}"] + dma_a(v.wv, sW1, f"s{sWs}", s, False),
            dma_b(v.wv, sW1, f"s{sWs}", s, False)]
WD_ = [x for s_ in range(8) for x in wdma(s_)]
def cut(mark):
    blk = a.lines[mark:]
    del a.lines[mark:]
    return blk
def interleave(chunks, blk):
    n = len(chunks)
    pos = [int(len(blk) * (k + 0.3) / n) for k in range(n)] if n else []
    k = 0
    full = True
    for i, l in enumerate(blk):
        ok = full and not (l.startswith(("s_addc", "s_cselect", "s_cbranch", "s_movrels")) or l.endswith(":"))
        while k < n and i >= pos[k] and ok:
            for x in chunks[k]: a(x)
            k += 1
        a(l)
        if l.startswith("s_mov_b64 exec"): full = l.endswith("-1")
    while k < n:
        for x in chunks[k]: a(x)
        k += 1
NA = 16
a(f"s_lshl_b32 s{sT0}, s2, 11")
a(f"s_add_u32 s{sTgt}, s{sTgt}, s{sT0}")
a(f"s_addc_u32 s{sTgt+1}, s{sTgt+1}, 0")
a(f"s_mov_b32 s{sTgt+2}, 2048")
a(f"s_mov_b32 s{sTgt+3}, 0x00020000")
a(f"s_mov_b32 s{sB1+2}, 256")
a(f"s_mov_b32 s{sB1+3}, 0x00020000")
a(f"s_mov_b32 s{sW2+2}, 256")
a(f"s_mov_b32 s{sW2+3}, 0x00020000")
a(f"s_lshl_b32 s{sT0}, s{sW}, 10")
a(f"s_add_u32 s{sT0}, s{sT0}, s{sMB}")
a(f"s_add_u32 m0, s{sT0}, {BIAS}")
a(f"s_cmp_ge_u32 s{sW}, 2")
a("s_cbranch_scc1 L_stg_bw")
a(f"s_lshl_b32 s{sT0}, s{sW}, 2")
a(f"v_add_u32 {vr(tA)}, s{sT0}, {vr(tQ)}")
a(f"v_xor_b32 {vr(tC)}, {vr(tA)}, {vr(tN4)}")
a(f"v_lshlrev_b32 {vr(tC)}, 4, {vr(tC)}")
a(f"v_lshl_add_u32 {vr(tC)}, {vr(tA)}, 8, {vr(tC)}")
a(f"buffer_load_dwordx4 {vr(tC)}, {srd(sTgt)}, 0 offen lds")
a("s_branch L_stg_done")
a.label("L_stg_bw")
a(f"v_lshlrev_b32 {vr(tC)}, 4, {vr(tLane)}")
a(f"s_cmp_eq_u32 s{sW}, 2")
a("s_cbranch_scc0 L_stg_w2")
a(f"buffer_load_dwordx4 {vr(tC)}, {srd(sB1)}, 0 offen lds")
a("s_branch L_stg_done")
a.label("L_stg_w2")
a(f"buffer_load_dwordx4 {vr(tC)}, {srd(sW2)}, 0 offen lds")
a.label("L_stg_done")
NSTG = 1
wv8 = sT0 + 2
if FL("tw"):
    a(f"s_lshr_b32 s{sT0}, s2, 1")
    a(f"s_lshr_b32 s{sT0+1}, s{sT0}, 3")
    a(f"s_xor_b32 s{sT0}, s{sT0}, s{sT0+1}")
    a(f"s_lshr_b32 s{sT0+1}, s{sT0+1}, 2")
    a(f"s_xor_b32 s{sT0}, s{sT0}, s{sT0+1}")
    a(f"s_and_b32 s{sT0}, s{sT0}, 7")
    a(f"s_lshl_b32 s{sT0}, s{sT0}, 14")
    a(f"s_lshl_b32 s{sT0+1}, s{sG}, 13")
    a(f"s_add_u32 s{sT0}, s{sT0}, s{sT0+1}")
    a(f"s_lshl_b32 s{sT0+1}, s{sW}, 11")
    a(f"s_add_u32 s{sT0}, s{sT0}, s{sT0+1}")
    a(f"v_lshlrev_b32 {vr(tC)}, 7, {vr(tN4)}")
    a(f"s_mov_b64 exec, 0xffff")
    a(f"buffer_load_dword {vr(v.b2c)}, {vr(tC)}, {srd(sW1)}, s{sT0} offen")
    a(f"s_mov_b64 exec, -1")
    NSTG += 1
a(f"s_mul_i32 s{sT0}, s2, {8*51200}")
a(f"s_add_u32 s{sHist}, s{sHist}, s{sT0}")
a(f"s_addc_u32 s{sHist+1}, s{sHist+1}, 0")
a(f"s_mov_b32 s{sHist+2}, {8*51200}")
a(f"s_mov_b32 s{sHist+3}, 0x00020000")
a(f"s_lshl_b32 s{sT0}, s2, 11")
a(f"s_add_u32 s{sOut}, s{sOut}, s{sT0}")
a(f"s_addc_u32 s{sOut+1}, s{sOut+1}, 0")
a(f"s_mov_b32 s{sOut+2}, 256")
a(f"s_mov_b32 s{sOut+3}, 0x00020000")

if FL("th"):
    a(f"s_lshl_b32 s{sT0}, s{sW}, 3")
    a(f"v_add_u32 {vr(tC)}, s{sT0}, {vr(tLane)}")
    a(f"v_lshlrev_b32 {vr(tC)}, 14, {vr(tC)}")
    a(f"s_mov_b64 exec, 0xff")
    a(f"buffer_load_dword {vr(v.b2c+1)}, {vr(tC)}, {srd(sHist)}, 0 offen")
    a(f"s_mov_b64 exec, -1")
    NSTG += 1
def addm(dst, const, src):
    a(f"s_add_u32 s{sT0+9}, s{sMB}, {const}")
    a(f"v_add_u32 {vr(dst)}, s{sT0+9}, {vr(src)}")

tH, tI = v.BR + 12, v.BR + 13
sRB = sT0 + 8
sgT = v.Y0
aW = v.D3
tBW = v.tmp

def blk_fill():
    F4 = v.H
    a(f"v_lshlrev_b32 {vr(tA)}, 4, v0")
    addm(tA, 0, tA)
    a(f"v_mov_b32 {vr(tB)}, 0")
    a(f"v_cmp_gt_u32 vcc, 224, v0")
    for i in range(4, 8): a(f"v_mov_b32 {vr(F4+i)}, 0")
    a(f"v_mov_b32 {vr(tC)}, -1")
    a(f"v_cndmask_b32 {vr(F4)}, {vr(tB)}, {vr(tC)}, vcc")
    for i in range(1, 4): a(f"v_mov_b32 {vr(F4+i)}, {vr(F4)}")
    a(f"ds_write_b128 {vr(tA)}, {vr(F4,4)}")
    a(f"v_add_u32 {vr(tC)}, 4096, {vr(tA)}")
    a(f"s_add_u32 s{sT0}, s{sMB}, {BIAS-16}")
    a(f"v_min_u32 {vr(tC)}, s{sT0}, {vr(tC)}")
    a(f"ds_write_b128 {vr(tC)}, {vr(F4+4,4)}")
    a(f"ds_write_b128 {vr(tA)}, {vr(F4+4,4)} offset:{DIAG}")
    a(f"v_add_u32 {vr(tC)}, {DIAG+4096}, {vr(tA)}")
    a(f"s_add_u32 s{sT0}, s{sMB}, {DIAG+4224-16}")
    a(f"v_min_u32 {vr(tC)}, s{sT0}, {vr(tC)}")
    a(f"ds_write_b128 {vr(tC)}, {vr(F4+4,4)}")

def phi(dst, r, t):
    a(f"v_lshrrev_b32 {vr(dst)}, 2, {vr(r)}")
    a(f"v_and_b32 {vr(dst)}, 4, {vr(dst)}")
    a(f"v_lshrrev_b32 {vr(t)}, 1, {vr(r)}")
    a(f"v_and_b32 {vr(t)}, 3, {vr(t)}")
    a(f"v_or_b32 {vr(dst)}, {vr(dst)}, {vr(t)}")

def blk_dma():
    a(f"v_lshrrev_b32 {vr(tB)}, 3, {vr(tLane)}")
    a(f"s_lshl_b32 s{sT0}, s{sW}, 3")
    a(f"v_add_u32 {vr(tB)}, s{sT0}, {vr(tB)}")
    phi(tC, tB, tD)
    a(f"v_and_b32 {vr(tD)}, 7, {vr(tLane)}")
    a(f"v_xor_b32 {vr(tC)}, {vr(tC)}, {vr(tD)}")
    a(f"v_lshlrev_b32 {vr(v.lane_off)}, 4, {vr(tC)}")
    a(f"v_lshlrev_b32 {vr(v.idxA)}, 1, {vr(tB)}")
    addm(v.idxA, IDX, v.idxA)

def blk_cd():
    a(f"v_and_b32 {vr(tH)}, 3, {vr(tN4)}")
    a(f"v_lshrrev_b32 {vr(tI)}, 1, {vr(tH)}")
    a(f"s_and_b32 s{sT0}, s{sW}, 1")
    a(f"s_lshl_b32 s{sT0}, s{sT0}, 2")
    a(f"v_or_b32 {vr(tI)}, s{sT0}, {vr(tI)}")
    a(f"v_and_b32 {vr(tH)}, 1, {vr(tH)}")
    a(f"v_lshlrev_b32 {vr(tH)}, 3, {vr(tH)}")
    a(f"s_lshr_b32 s{sT0+1}, s{sW}, 1")
    a(f"s_lshl_b32 s{sT0+1}, s{sT0+1}, 12")
    a(f"v_add_u32 {vr(tH)}, s{sT0+1}, {vr(tH)}")

def blk_aW():
    a(f"v_and_b32 {vr(tE)}, 1, {vr(tQ)}")
    a(f"v_lshl_or_b32 {vr(tD)}, {vr(tE)}, 1, {vr(tI)}")
    a(f"v_lshrrev_b32 {vr(tA)}, 2, {vr(tN4)}")
    a(f"v_lshl_add_u32 {vr(tB)}, {vr(tHi)}, 3, {vr(tA)}")
    a(f"v_and_b32 {vr(tF)}, 2, {vr(tA)}")
    a(f"v_lshlrev_b32 {vr(tF)}, 1, {vr(tF)}")
    a(f"v_xor_b32 {vr(tF)}, {vr(tF)}, {vr(tD)}")
    a(f"v_lshl_add_u32 {vr(tF)}, {vr(tF)}, 4, {vr(tH)}")
    for f in range(2):
        for u in range(2):
            a(f"v_add_u32 {vr(tE)}, {16*f + 4*u}, {vr(tB)}")
            a(f"v_lshl_add_u32 {vr(aW + 2*f + u)}, {vr(tE)}, 7, {vr(tF)}")

def blk_aH():
    a(f"s_lshl_b32 s{sRB}, s{sG}, 16")
    phi(tA, tM, tB)
    a(f"v_xor_b32 {vr(tA)}, {vr(tA)}, {vr(tHi)}")
    a(f"v_lshlrev_b32 {vr(tB)}, 7, {vr(tM)}")
    a(f"v_add_u32 {vr(tB)}, s{sRB}, {vr(tB)}")
    for k in range(4):
        a(f"v_xor_b32 {vr(tC)}, {2*k}, {vr(tA)}")
        a(f"v_lshl_add_u32 {vr(v.aH+k)}, {vr(tC)}, 4, {vr(tB)}")

def blk_aT():
    a(f"s_lshl_b32 s{sRB}, s{sG}, 16")
    a(f"v_lshrrev_b32 {vr(tA)}, 2, {vr(tN4)}")
    a(f"v_and_b32 {vr(tB)}, 1, {vr(tA)}")
    a(f"v_lshlrev_b32 {vr(tB)}, 4, {vr(tB)}")
    a(f"v_lshrrev_b32 {vr(tA)}, 1, {vr(tA)}")
    a(f"v_add_u32 {vr(tB)}, {vr(tA)}, {vr(tB)}")
    a(f"v_lshl_add_u32 {vr(tB)}, {vr(tQ)}, 2, {vr(tB)}")
    a(f"v_add_u32 {vr(tC)}, s{sRB}, {vr(tH)}")
    for u in range(2):
        a(f"v_add_u32 {vr(tE)}, {2*u}, {vr(tB)}")
        phi(tF, tE, tG)
        a(f"v_xor_b32 {vr(tF)}, {vr(tF)}, {vr(tI)}")
        a(f"v_lshl_add_u32 {vr(tE)}, {vr(tE)}, 7, {vr(tC)}")
        for dt in range(2):
            a(f"v_xor_b32 {vr(tG)}, {2*dt}, {vr(tF)}")
            a(f"v_lshl_add_u32 {vr(v.aT + 2*u + dt)}, {vr(tG)}, 4, {vr(tE)}")

def blk_part():
    a(f"s_lshl_b32 s{sT0}, s{sW}, 6")
    a(f"v_lshlrev_b32 {vr(tA)}, 2, {vr(tN4)}")
    a(f"v_add_u32 {vr(tA)}, s{sT0}, {vr(tA)}")
    addm(v.partW, PART, tA)
    a(f"v_and_b32 {vr(tA)}, 3, {vr(tN4)}")
    a(f"v_lshlrev_b32 {vr(tA)}, 6, {vr(tA)}")
    a(f"v_lshl_add_u32 {vr(tA)}, {vr(tQ)}, 4, {vr(tA)}")
    addm(v.partR, PART, tA)
    a(f"v_lshlrev_b32 {vr(tA)}, 1, {vr(tN4)}")
    addm(v.maskA, MASKL, tA)

def blk_diag():
    a(f"v_and_b32 {vr(tA)}, 0x13, {vr(tM)}")
    a(f"v_lshrrev_b32 {vr(tB)}, 1, {vr(tM)}")
    a(f"v_and_b32 {vr(tB)}, 4, {vr(tB)}")
    a(f"v_or_b32 {vr(tA)}, {vr(tA)}, {vr(tB)}")
    a(f"v_lshlrev_b32 {vr(tB)}, 1, {vr(tM)}")
    a(f"v_and_b32 {vr(tB)}, 8, {vr(tB)}")
    a(f"v_or_b32 {vr(tA)}, {vr(tA)}, {vr(tB)}")
    a(f"v_lshrrev_b32 {vr(tB)}, 2, {vr(tM)}")
    a(f"v_and_b32 {vr(tB)}, 1, {vr(tB)}")
    a(f"v_xor_b32 {vr(tB)}, {vr(tB)}, {vr(tHi)}")
    a(f"v_lshrrev_b32 {vr(tC)}, 4, {vr(tM)}")
    a(f"v_lshl_or_b32 {vr(tC)}, {vr(tB)}, 1, {vr(tC)}")
    a(f"v_lshlrev_b32 {vr(tD)}, 4, {vr(tA)}")
    a(f"v_mov_b32 {vr(tE)}, 512")
    for f in range(2):
        a(f"v_cmp_eq_u32 vcc, {f}, {vr(tC)}")
        a(f"v_cndmask_b32 {vr(tF)}, {vr(tE)}, {vr(tD)}, vcc")
        addm(v.aDiag + f, DIAG, tF)
    a(f"v_and_b32 {vr(tD)}, 7, {vr(tA)}")
    a(f"v_lshrrev_b32 {vr(tD)}, 1, {vr(tD)}")
    a(f"v_lshl_add_u32 {vr(tD)}, {vr(tC)}, 2, {vr(tD)}")
    a(f"v_and_b32 {vr(tE)}, 1, {vr(tM)}")
    a(f"v_lshlrev_b32 {vr(tE)}, 4, {vr(tE)}")
    a(f"v_mov_b32 {vr(tF)}, 0x3F80")
    a(f"v_lshlrev_b32 {vr(tE)}, {vr(tE)}, {vr(tF)}")
    a(f"v_mov_b32 {vr(tF)}, 0")
    for f in range(2):
        for rho in range(4):
            a(f"v_cmp_eq_u32 vcc, {4*f+rho}, {vr(tD)}")
            a(f"v_cndmask_b32 {vr(v.D2 + 4*f + rho)}, {vr(tF)}, {vr(tE)}, vcc")

def blk_diagW():
    a(f"s_mul_i32 s{sT0}, s{sW}, 528")
    a(f"v_and_b32 {vr(tA)}, 7, {vr(tM)}")
    a(f"v_lshlrev_b32 {vr(tA)}, 1, {vr(tA)}")
    a(f"v_lshl_add_u32 {vr(tA)}, {vr(tM)}, 4, {vr(tA)}")
    a(f"v_add_u32 {vr(tA)}, s{sT0}, {vr(tA)}")
    addm(v.diagW, DIAG, tA)

def blk_bias():
    a(f"s_lshl_b32 s{sT0}, s{sW}, 7")
    a(f"v_lshlrev_b32 {vr(tA)}, 4, {vr(tHi)}")
    a(f"v_add_u32 {vr(tA)}, s{sT0}, {vr(tA)}")
    addm(v.biasA, BIAS, tA)
    a(f"v_lshrrev_b32 {vr(tA)}, 2, {vr(tM)}")
    a(f"v_lshl_add_u32 {vr(tBW)}, {vr(tA)}, 9, {vr(v.biasA)}")
    a(f"s_lshl_b32 s{sT0}, s{sW}, 6")
    a(f"v_lshlrev_b32 {vr(tA)}, 1, {vr(tLane)}")
    a(f"v_add_u32 {vr(tA)}, s{sT0}, {vr(tA)}")
    a(f"v_mov_b32 {vr(tB)}, 0x40000000")
    a(f"v_cmp_gt_u32 vcc, 32, {vr(tLane)}")
    a(f"v_cndmask_b32 {vr(v.outA)}, {vr(tB)}, {vr(tA)}, vcc")

B1R = v.WAC + 32
TQ = v.WAC + 40
IX = [v.WAC + 48, v.b2c, v.b2c + 1, v.m0, v.m1]
aW1 = [v.WAC + 60 + k for k in range(4)]
TFR = v.Y
AD = v.WAC
AC = v.BR
sgT2 = v.WAC + 52
def blk_ad():
    for ks in range(8):
        a(f"v_xor_b32 {vr(AD+8+ks)}, {2*ks}, {vr(sgT+1)}")
        a(f"v_lshl_add_u32 {vr(AD+8+ks)}, {vr(AD+8+ks)}, 4, {vr(sgT)}")
    for b in range(8):
        a(f"v_xor_b32 {vr(AD+b)}, {b}, {vr(sgT+2)}")
        a(f"v_lshl_add_u32 {vr(AD+b)}, {vr(AD+b)}, 4, {vr(sgT+3)}")
    for k in range(4): a(f"v_add_u32 {vr(aW1[k])}, 0x10000, {vr(aW+k)}")

def blk_stg():
    a(f"v_lshrrev_b32 {vr(tA)}, 2, {vr(tM)}")
    a(f"v_lshlrev_b32 {vr(tB)}, 8, {vr(tA)}")
    addm(sgT, BIAS, tB)
    a(f"v_xor_b32 {vr(sgT+1)}, {vr(tA)}, {vr(tHi)}")
    a(f"s_lshl_b32 s{sT0}, s{sW}, 2")
    a(f"v_lshrrev_b32 {vr(tA)}, 3, {vr(tM)}")
    a(f"v_add_u32 {vr(sgT+2)}, s{sT0}, {vr(tA)}")
    a(f"v_and_b32 {vr(tA)}, 7, {vr(tM)}")
    a(f"v_lshlrev_b32 {vr(tA)}, 1, {vr(tA)}")
    addm(sgT+3, BIAS, tA)
    a(f"s_lshl_b32 s{sT0}, s{sW}, 6")
    a(f"v_lshlrev_b32 {vr(tA)}, 3, {vr(tHi)}")
    a(f"v_add_u32 {vr(tA)}, s{sT0}, {vr(tA)}")
    addm(sgT2, BIAS + 2048, tA)
    a(f"v_xor_b32 {vr(tA)}, {vr(tQ)}, {vr(tN4)}")
    a(f"v_and_b32 {vr(tA)}, 1, {vr(tA)}")
    a(f"v_lshlrev_b32 {vr(tA)}, 9, {vr(tA)}")
    a(f"v_lshrrev_b32 {vr(tB)}, 1, {vr(tQ)}")
    a(f"v_lshl_add_u32 {vr(tA)}, {vr(tB)}, 3, {vr(tA)}")
    a(f"v_add_u32 {vr(tA)}, s{sT0}, {vr(tA)}")
    addm(sgT2+1, BIAS + 3072, tA)

def grab(fn):
    m = len(a.lines); fn(); return cut(m)
def weave(main, side, start=0):
    n = len(main); k = 0
    for i, x in enumerate(main):
        for y in x.split("\n"): a(y)
        want = (len(side) * (i + 1 - start)) // max(1, n - start) if i >= start else 0
        while k < want:
            a(side[k]); k += 1
    while k < len(side):
        a(side[k]); k += 1

LATE = {"aH": blk_aH, "aT": blk_aT, "part": blk_part, "bias": blk_bias, "diag": blk_diag, "diagW": blk_diagW}
late = [x for x in OPT("late", "aH,aT,part,bias").split(",") if x]
early = [x for x in LATE if x not in late]
ND0 = int(OPT("nd0", "8"))
_m = len(a.lines)
blk_fill(); blk_dma(); blk_cd(); blk_aW(); blk_stg(); blk_ad()
for x in LATE: LATE[x]()
interleave(WD_[:ND0], cut(_m))
a(f"s_mov_b32 s{sSel}, 0xFFFF0000")
a(f"s_mov_b32 s{sSel+1}, 0xFFFF0000")
ts("static")
a(f"s_waitcnt vmcnt({ND0 + NSTG})")
ts("maskw")
_m = len(a.lines)
tP = v.Y1 + 4
for b in range(2):
    for e in range(4):
        src = MK + 2*b + (e >> 1)
        lit = "0x7fff" if e % 2 == 0 else "0x7fff0000"
        bal = sBal + 2 * (4*b + e)
        a(f"v_and_b32 {vr(tA)}, {lit}, {vr(src)}")
        a(f"v_cmp_ne_u32 {sp(bal)}, 0, {vr(tA)}")
for b in range(2):
    for e in range(4):
        bal = sBal + 2 * (4*b + e)
        a(f"v_mbcnt_lo_u32_b32 {vr(tP + 4*b + e)}, s{bal}, 0")
        a(f"v_mbcnt_hi_u32_b32 {vr(tP + 4*b + e)}, s{bal+1}, {vr(tP + 4*b + e)}")
        a(f"s_bcnt1_i32_b64 s{sT0 + 4*b + e}, {sp(bal)}")
for b in range(2):
    t0 = sT0 + 4*b
    a(f"s_add_u32 s{sT0+10}, s{t0}, s{t0+1}")
    a(f"s_add_u32 s{sT0+11}, s{sT0+10}, s{t0+2}")
    a(f"s_add_u32 s{sT0+8+b}, s{sT0+11}, s{t0+3}")
    a(f"s_mov_b32 s{t0+1}, s{t0}")
    a(f"s_mov_b32 s{t0}, 0")
    a(f"s_mov_b32 s{t0+2}, s{sT0+10}")
    a(f"s_mov_b32 s{t0+3}, s{sT0+11}")
    a(f"s_add_u32 s{sT0+12+b}, s{sT0+8+b}, 31")
    a(f"s_lshr_b32 s{sT0+12+b}, s{sT0+12+b}, 5")
    a(f"s_max_u32 s{sT0+12+b}, s{sT0+12+b}, 1")
a(f"s_lshl_b32 s{sT0+14}, s{sW}, 3")
a(f"s_add_u32 s{sT0+14}, s{sT0+14}, {CNT}")
a(f"s_add_u32 s{sT0+14}, s{sT0+14}, s{sMB}")
a(f"v_mov_b32 {vr(tA)}, s{sT0+14}")
tF2 = tF
assert tF2 % 2 == 0
a(f"v_mov_b32 {vr(tF2)}, s{sT0+12}")
a(f"v_mov_b32 {vr(tF2+1)}, s{sT0+13}")
a(f"ds_write_b64 {vr(tA)}, {vr(tF2,2)}")
ND1 = int(OPT("nd1", "4"))
interleave(WD_[ND0:ND0+ND1], cut(_m))
a("s_waitcnt lgkmcnt(0)")
a("s_barrier")
ts("B1")
_m = len(a.lines)
tR = v.H + 8
a(f"s_add_u32 s{sT0+14}, s{sMB}, {CNT}")
a(f"v_mov_b32 {vr(tA)}, s{sT0+14}")
a(f"ds_read_b128 {vr(tR,4)}, {vr(tA)}")
a(f"ds_read_b128 {vr(tR+4,4)}, {vr(tA)} offset:16")
a(f"s_mov_b32 s{sDelta}, 2112")
a(f"v_lshlrev_b32 {vr(tB)}, 2, {vr(tLane)}")
a(f"s_mul_i32 s{sT0+16}, s{sW}, 400")
a(f"v_add_u32 {vr(tB)}, s{sT0+16}, {vr(tB)}")
a("s_waitcnt lgkmcnt(0)")
for j in range(8):
    a(f"v_readfirstlane_b32 s{sP+1+j}, {vr(tR+j)}")
a(f"s_mov_b32 s{sP}, 0")
for j in range(8):
    a(f"s_add_u32 s{sP+1+j}, s{sP+1+j}, s{sP+j}")
a(f"s_lshl_b32 m0, s{sW}, 1")
a(f"s_movrels_b32 s{sT0+14}, s{sP}")
a(f"s_movrels_b32 s{sT0+15}, s{sP+1}")
for b in range(2):
    a(f"s_lshl_b32 s{sT0+14+b}, s{sT0+14+b}, 6")
    a(f"s_add_u32 s{sT0+14+b}, s{sT0+14+b}, s{sMB}")
    for e in range(4):
        bal = sBal + 2 * (4*b + e)
        a(f"s_lshl_b32 s{sT0+16}, s{sT0+4*b+e}, 1")
        a(f"s_add_u32 s{sT0+16}, s{sT0+16}, s{sT0+14+b}")
        a(f"v_lshl_add_u32 {vr(tC if e % 2 == 0 else tE)}, {vr(tP+4*b+e)}, 1, s{sT0+16}")
        a(f"v_add_u32 {vr(tD if e % 2 == 0 else tG)}, {200*b + e}, {vr(tB)}")
        a(f"s_mov_b64 exec, {sp(bal)}")
        a(f"ds_write_b16 {vr(tC if e % 2 == 0 else tE)}, {vr(tD if e % 2 == 0 else tG)} offset:{IDX}")
        op = "ds_write_b16" if e % 2 == 0 else "ds_write_b16_d16_hi"
        a(f"{op} {vr(tC if e % 2 == 0 else tE)}, {vr(MK + 2*b + (e>>1))} offset:{MASKL + 64}")
        a(f"s_mov_b64 exec, -1")
a(f"s_mov_b32 s{sNT}, s{sP+8}")
a(f"s_mov_b64 {sp(sFIRST)}, 0")
a(f"s_mov_b64 {sp(sLAST)}, 0")
for j in range(8):
    if j > 0:
        a(f"s_lshl_b64 {sp(sT0+16)}, 1, s{sP+j}")
        a(f"s_or_b64 {sp(sFIRST)}, {sp(sFIRST)}, {sp(sT0+16)}")
    a(f"s_add_u32 s{sT0+18}, s{sP+j+1}, 1")
    a(f"s_lshl_b64 {sp(sT0+16)}, 1, s{sT0+18}")
    a(f"s_or_b64 {sp(sLAST)}, {sp(sLAST)}, {sp(sT0+16)}")
a(f"s_sub_u32 s{sT0+18}, s{sNT}, 1")
a(f"s_lshl_b64 {sp(sEND)}, 1, s{sT0+18}")
if FL("nofirst"): a(f"s_mov_b64 {sp(sFIRST)}, 0")
if FL("nolast"): a(f"s_mov_b64 {sp(sLAST)}, 0")
interleave(WD_[ND0+ND1:], cut(_m))
ts("lists")
a(f"s_waitcnt vmcnt({OPT('b2vm', '8')}) lgkmcnt(0)")
a("s_barrier")
ts("B2a")
def tr_list(dst, slot0, base, tiles=range(4)):
    return [f"ds_read_b64_tr_b16 {vr(dst + 8*T + 4*f + 2*u, 2)}, {vr(base[2*f + u])} offset:{(slot0+T)*8192}"
            for T in tiles for f in range(2) for u in range(2)]
aW0 = [aW + k for k in range(4)]
def qshift():
    return [f"v_alignbit_b32 {vr(v.Q+k)}, {vr(v.Q+k+1)}, {vr(v.Q+k)}, 16" for k in range(3)] + \
           [f"v_lshrrev_b32 {vr(v.Q+3)}, 16, {vr(v.Q+3)}"]
Fr = lambda f: vr(v.D2 + 4*f, 4)
def wac(T):
    D = vr(v.WAC + 16*T, 16)
    return [f"{MF32} {D}, {Fr(0)}, {vr(v.WE + 8*T, 4)}, 0", f"{MF32} {D}, {Fr(1)}, {vr(v.WE + 8*T + 4, 4)}, {D}",
            f"{MF32} {D}, {Fr(0)}, {vr(v.H + 8*T, 4)}, {D}", f"{MF32} {D}, {Fr(1)}, {vr(v.H + 8*T + 4, 4)}, {D}"]
def scale(r, n):
    return [f"v_mul_f32 {vr(r+i)}, s{sC}, {vr(r+i)}\nv_mul_f32 {vr(r+i+1)}, s{sC}, {vr(r+i+1)}" for i in range(0, n, 2)]
Dc = [f"{MF32} {vr(AC,16)}, {vr(v.H + 4*ks, 4)}, {vr(TFR + 4*ks, 4)}, {'0' if ks == 0 else vr(AC,16)}" for ks in range(8)]
Db = [f"{MF32} {vr(AC,16)}, {vr(v.H + 4*ks, 4)}, {vr(TFR + 4*ks, 4)}, {vr(AC,16)}" for ks in range(8)]
def mix(mf, other):
    out = []; n = len(mf); k = 0
    for i, x in enumerate(mf):
        out.append(x)
        want = (len(other) * (i + 1)) // n
        out += other[k:want]; k = want
    return out
a.begin_auto()
Wc = lambda T: tr_list(v.H, 0, aW1, [T])
Wa = lambda T: tr_list(v.WE, 0, aW0, [T])
emit([f"ds_read_b128 {vr(TFR+4*ks,4)}, {vr(AD+8+ks)}" for ks in range(8)])
emit(Wc(0) + Wa(0))
emit([f"ds_read_u16_d16_hi {vr(TQ+b)}, {vr(AD+b)} offset:{256*b}" for b in range(8)])
emit(Wc(1) + Wa(1))
tq = [f"v_mul_f32 {vr(TQ+b)}, s{sC}, {vr(TQ+b)}" for b in range(8)]
tq += [f"v_cvt_pk_bf16_f32 {vr(v.Q+k)}, {vr(TQ+2*k)}, {vr(TQ+2*k+1)}" for k in range(4)]
tq += [f"ds_write_b16 {vr(v.diagW)}, {vr(v.Q)}"] + qshift() + [f"v_add_u32 {vr(v.diagW)}, 2112, {vr(v.diagW)}"]
small = [f"ds_read_u16 {vr(IX[t])}, {vr(v.idxA)} offset:{64*t}" for t in range(5)]
small += [f"ds_read_u16 {vr(v.idx)}, {vr(v.idxA)} offset:{64*5}"]
small2 = [f"ds_read_b64 {vr(B1R+2*i,2)}, {vr(sgT2)} offset:{16*i}" for i in range(4)]
small2 += [f"ds_read_b64 {vr(v.A3+4*g+2*hh,2)}, {vr(sgT2+1)} offset:{32*g+16*hh}" for g in range(2) for hh in range(2)]
w0, w1, w2, w3 = wac(0), wac(1), wac(2), wac(3)
emit(mix([Dc[0], Dc[1]] + w0, Wc(2) + Wa(2) + small + tq[:6]))
emit(mix([Dc[2], Dc[3]] + w1, Wc(3) + Wa(3) + small2 + tq[6:]))
for t in range(5):
    a(f"v_lshl_add_u32 {vr(IX[t])}, {vr(IX[t])}, 8, {vr(v.lane_off)}")
a.end_auto()
ts("preB3a")
a("s_waitcnt vmcnt(0) lgkmcnt(0)")
a("s_barrier")
ts("B3a")
def prep_parts():
    H = v.H; X = v.X; Y = v.Y
    D0 = vr(Y, 16); D1 = vr(H + 16, 16)
    p = {}
    p["qw"] = [f"ds_write_b16 {vr(v.diagW)}, {vr(v.Q)}"] + qshift() + [f"v_add_u32 {vr(v.biasA)}, 0x200, {vr(v.biasA)}"]
    p["rb"] = [f"ds_read_b128 {vr(v.BR + 4*i, 4)}, {vr(v.biasA)} offset:{32*i}" for i in range(4)]
    p["ptr"] = [f"v_add_u32 {vr(v.aDiag+f)}, s{sDelta}, {vr(v.aDiag+f)}" for f in range(2)] + \
               [f"s_sub_u32 s{sDelta}, 0, s{sDelta}", f"v_add_u32 {vr(v.diagW)}, s{sDelta}, {vr(v.diagW)}"]
    return p

dm = []
for t in range(4):
    dm += ["\n".join(dma_a(IX[t], sHist, "0", t, NT_HIST)), "\n".join(dma_b(IX[t], sHist, "0", t, NT_HIST))]
DPOS = [int(x) for x in OPT("dpos", "0,1,6,9,12,15,18,21").split(",")]
_mf = [0]
def emit_m(lst):
    for x in lst:
        emit([x])
        if x.startswith("v_mfma"):
            for j in range(8):
                if DPOS[j] == _mf[0]: emit([dm[j]])
            _mf[0] += 1
assert max(DPOS[:2]) < 2 and max(DPOS) < 26
a.begin_auto()
Wd = tr_list(v.WD, 4, aW0)
Wb = lambda T: tr_list(v.H, 4, aW0, [T])
B1F = v.WAC + 48
b1u = []
for i in range(4):
    b1u += [f"v_lshlrev_b32 {vr(B1F+4*i)}, 16, {vr(B1R+2*i)}", f"v_and_b32 {vr(B1F+4*i+1)}, 0xffff0000, {vr(B1R+2*i)}",
            f"v_lshlrev_b32 {vr(B1F+4*i+2)}, 16, {vr(B1R+2*i+1)}", f"v_and_b32 {vr(B1F+4*i+3)}, 0xffff0000, {vr(B1R+2*i+1)}"]
bsub = [f"v_sub_f32 {vr(AC+i)}, {vr(B1F+i)}, {vr(AC+i)}" for i in range(16)]
up = [f"v_add_u32 {vr(aW+k)}, 0x10000, {vr(aW+k)}" for k in range(4)]
dn = [f"v_subrev_u32 {vr(aW+k)}, 0x10000, {vr(aW+k)}" for k in range(4)]
s0, s1, s2, s3 = [scale(v.WAC + 16*T, 16) for T in range(4)]
X = v.X; Y = v.Y; H = v.H
emit_m([Dc[4]] + Wb(0) + [Dc[5]] + Wb(1) + up + [Dc[6]] + Wd[0:4] + b1u[0:8] + [Dc[7]] + Wd[4:8] + b1u[8:16])
emit_m(mix(w2, Wd[8:16] + dn + bsub))
emit_m([w3[0]] + Wb(2) + s0[0:3] + [w3[1]] + s0[3:6] + [w3[2]] + s0[6:8] + s1[0:2] + [w3[3]] + Wb(3) + s1[2:4])
emit([f"ds_read_b128 {vr(v.WE + 8*T + 4*f, 4)}, {vr(v.aDiag+f)} offset:{528*T}" for T in range(4) for f in range(2)])
ts("wac")
emit_m(mix(Db, s1[4:8] + s2 + s3))
WCTR = MISC0 + PART + 520
if not FL("b4"):
    a(f"v_mov_b32 {vr(v.D3)}, {WCTR}")
    a("s_mov_b64 exec, 1")
    a(f"ds_inc_u32 {vr(v.D3)}, {vr(v.D3)}")
    a("s_mov_b64 exec, -1")
ts("chain2")
PD = [Y, X, H, H + 16]
def P(T):
    D = vr(PD[T], 16)
    return [f"{MF32} {D}, {vr(v.WE+8*T,4)}, {vr(v.WD+8*T,4)}, {vr(v.WAC+16*T,16)}",
            f"{MF32} {D}, {vr(v.WE+8*T+4,4)}, {vr(v.WD+8*T+4,4)}, {D}"]
def cv(T):
    return [f"v_cvt_pk_bf16_f32 {vr(v.WE + 8*T + i)}, {vr(PD[T]+2*i)}, {vr(PD[T]+2*i+1)}" for i in range(8)]
p = prep_parts()
a(f"s_lshl_b32 s{sB2v}, s{sB2v}, 16")
a(f"s_cmp_eq_u32 s{sW}, 0")
a(f"s_cselect_b32 s{sB2v}, s{sB2v}, 0")
sc = scale(AC, 16)
bw = [f"ds_write_b128 {vr(tBW)}, {vr(AC+4*i,4)} offset:{32*i}" for i in range(4)]
zD = [f"v_mov_b32 {vr(v.D2+i)}, 0" for i in range(8)] + [f"v_mov_b32 {vr(v.D3+i)}, 0" for i in range(4)]
emit_m([P(0)[0]] + p["qw"][:-1] + [P(0)[1]] + p["ptr"] + zD[:4] + [P(1)[0]] + zD[4:] + [P(1)[1]])
emit_m(sc[:2] + bw[:1] + [P(2)[0]] + sc[2:4] + bw[1:2] + [P(2)[1]] + sc[4:6] + bw[2:3] + [P(3)[0]] + sc[6:8] + bw[3:4] + [P(3)[1]])
emit(cv(0))
a("s_waitcnt lgkmcnt(0)")
emit(p["rb"]); emit(p["qw"][-1:])
emit(cv(1))
a(f"v_mov_b32 {vr(v.b2c)}, s{sB2v}")
a(f"v_mov_b32 {vr(v.b2c+1)}, s{sB2v}")
for i in range(8): a(f"v_mov_b32 {vr(v.Y+i)}, 0")
emit(cv(2) + cv(3))
a.end_auto()
ts("prep0")
a(f"v_mov_b32 {vr(v.m0)}, 0")
a("s_waitcnt vmcnt(6) lgkmcnt(0)")
if FL("b4"):
    a("s_barrier")
else:
    a("s_mov_b64 exec, 1")
    a(f"ds_inc_u32 {vr(v.partR)}, {vr(v.partR)} offset:{CTR}")
    a("s_mov_b64 exec, -1")
    a(f"v_mov_b32 {vr(v.idx+0 if False else v.tmp)}, {WCTR}")
    a.label("L_b4")
    a(f"ds_read_b32 {vr(v.D3)}, {vr(v.partR)} offset:{CTR}")
    a(f"ds_read_b32 {vr(v.D3+1)}, {vr(v.tmp)}")
    a("s_waitcnt lgkmcnt(0)")
    a(f"v_readfirstlane_b32 s{sT0}, {vr(v.D3)}")
    a(f"v_readfirstlane_b32 s{sT0+1}, {vr(v.D3+1)}")
    a(f"s_lshr_b32 s{sT0+1}, s{sT0+1}, 1")
    a(f"s_min_u32 s{sT0}, s{sT0}, s{sT0+1}")
    a(f"s_cmp_ge_u32 s{sT0}, 4")
    a("s_cbranch_scc0 L_b4")
    a(f"v_mov_b32 {vr(v.D3)}, 0")
    a(f"v_mov_b32 {vr(v.D3+1)}, 0")
ts("B4")
dma(v.m1, sHist, "0", 4, NT_HIST)
a(f"v_mov_b32 {vr(v.m1)}, 0")
if PROF:
    for r in (97, 98, 99): a(f"s_mov_b32 s{r}, 0")
if FL("ilog"):
    a("s_memtime s[80:81]"); a("s_waitcnt lgkmcnt(0)"); a("s_mov_b32 s82, s80"); a("s_mov_b32 s84, 0")
    a(f"s_mov_b32 s86, s{sFIRST}"); a(f"s_mov_b32 s87, s{sLAST}")
    for r in range(56, 68): a(f"s_mov_b32 s{r}, 0")
a(f"s_mov_b32 s{sTgtR}, {0 if FL('b4') else 4}")
sOne = 68
a(f"s_mov_b32 s{sOne}, 1.0")
a(f"s_mov_b32 s{sOne+1}, 1.0")

def sig_stream():
    Y = v.Y
    e = [f"v_exp_f32 {vr(Y+i)}, {vr(Y+i)}" for i in range(16)]
    d = [f"v_add_f32 {vr(Y+i)}, 1.0, {vr(Y+i)}" for i in range(16)]
    if FL("pk"): d = [f"v_pk_add_f32 {vr(Y+i,2)}, {vr(Y+i,2)}, s[{sOne}:{sOne+1}]" for i in range(0, 16, 2)]
    r = [f"v_rcp_f32 {vr(Y+i)}, {vr(Y+i)}" for i in range(16)]
    c = [f"v_cvt_pk_bf16_f32 {vr(Y+k)}, {vr(Y+2*k)}, {vr(Y+2*k+1)}" for k in range(8)]
    return e + d + r[:8] + c[:4] + r[8:] + c[4:]

def score_mfma():
    Y = v.Y
    S1 = f"{MF16} {vr(v.D3,4)}, {vr(v.A3,4)}, {vr(Y,4)}, {vr(v.b2c,4)}"
    S2 = f"{MF16} {vr(v.D3,4)}, {vr(v.A3+4,4)}, {vr(Y+4,4)}, {vr(v.D3,4)}"
    if FL("noS"): S1 = S2 = "; skip"
    return [S1, S2]

def fin(par_off, addr=None):
    return [f"v_mul_f32 {vr(v.D3)}, {vr(v.D3)}, {vr(v.m0)}",
            f"v_mul_f32 {vr(v.D3+1)}, {vr(v.D3+1)}, {vr(v.m1)}",
            f"v_cvt_pk_bf16_f32 {vr(v.D3)}, {vr(v.D3)}, {vr(v.D3+1)}",
            f"ds_write_b32 {vr(v.partW if addr is None else addr)}, {vr(v.D3)} offset:{par_off}"]

def epilogue():
    D2 = v.D2; T = v.H
    for dt in range(2):
        a(f"v_add_f32 {vr(T+2*dt)}, {vr(D2+4*dt)}, {vr(D2+4*dt+1)}")
        a(f"v_add_f32 {vr(T+2*dt+1)}, {vr(D2+4*dt+2)}, {vr(D2+4*dt+3)}")
    for dt in range(2):
        a(f"v_add_f32 {vr(T+2*dt)}, {vr(T+2*dt)}, {vr(T+2*dt+1)}")
    for i in range(8):
        a(f"v_mov_b32 {vr(D2+i)}, 0")
    a(f"v_cndmask_b32 {vr(T)}, {vr(T)}, {vr(T+2)}, {sp(sSel)}")
    a(f"v_cvt_pk_bf16_f32 {vr(T)}, {vr(T)}, {vr(T)}")
    a(f"buffer_store_short {vr(T)}, {vr(v.outA)}, {srd(sOut)}, 0 offen")
    a(f"s_add_u32 s{sOut}, s{sOut}, 256")
    a(f"s_addc_u32 s{sOut+1}, s{sOut+1}, 0")

def pieces(u, grp):
    H = v.H; X = v.X; Y = v.Y
    c = {}
    c["Rh"] = [f"ds_read_b128 {vr(H+4*ks,4)}, {vr(v.aH + (ks&3))} offset:{u*8192 + 4096*(ks>>2)}" for ks in range(8)]
    c["Ri"] = f"ds_read_u16 {vr(v.idx)}, {vr(v.idxA)} offset:{64*(u+6)}"
    mo = 64 * (u + 1)
    c["Rm"] = [f"ds_read_u16_d16_hi {vr(v.m0)}, {vr(v.maskA)} offset:{mo}",
               f"ds_read_u16_d16_hi {vr(v.m1)}, {vr(v.maskA)} offset:{mo+32}"]
    c["fin"] = fin(((u - 1) & 1) * 256)
    c["G"] = [f"{MF32} {vr(Y,16)}, {vr(v.WE+4*ks,4)}, {vr(H+4*ks,4)}, {vr(v.BR,16) if ks == 0 else vr(Y,16)}" for ks in range(8)]
    c["ix"] = f"v_lshl_add_u32 {vr(v.tmp)}, {vr(v.idx)}, 8, {vr(v.lane_off)}"
    c["da"] = dma_a(v.tmp, sHist, "0", (u+5) & 7, NT_HIST)
    c["db"] = dma_b(v.tmp, sHist, "0", (u+5) & 7, NT_HIST)
    slot = (u - 2) & 7
    c["Rt"] = [f"ds_read_b64_tr_b16 {vr(X + 4*dt + 2*du, 2)}, {vr(v.aT + 2*du + dt)} offset:{slot*8192}" for du in range(2) for dt in range(2)]
    c["Rp"] = f"ds_read_b128 {vr(X+8,4)}, {vr(v.partR)} offset:{(u&1)*256}"
    c["G2"] = [f"{MF16} {vr(v.D2+4*dt,4)}, {vr(X+8,4)}, {vr(X+4*dt,4)}, {vr(v.D2+4*dt,4)}" for dt in range(2)]
    c["S"] = score_mfma()
    GAP = int(OPT("gap", "-1"))
    if GAP >= 0:
        c["G"] = [x + f"\ns_nop {GAP}" for x in c["G"]]
    N = "; skip"
    if FL("nog2"): c["Rt"] = [N]*4; c["Rp"] = N; c["G2"] = [N]*2
    if FL("nofin"): c["fin"] = [N]*4
    if FL("noH"): c["Rh"] = [N]*8
    return c

PRIO = not FL("noprio")
def prio(n): return [f"s_setprio {n}"] if PRIO else []
def arrive():
    return ["s_mov_b64 exec, 1", f"ds_inc_u32 {vr(v.partR)}, {vr(v.partR)} offset:{CTR}", "s_mov_b64 exec, -1"]
def poll_rd(): return [f"ds_read_b32 {vr(v.tmp)}, {vr(v.partR)} offset:{CTR}"]
def poll_chk(target):
    return ["s_waitcnt lgkmcnt(0)", f"v_readfirstlane_b32 s{sCv}, {vr(v.tmp)}", f"s_cmp_ge_u32 s{sCv}, s{sTgtC}",
            f"s_cbranch_scc0 {target}"]
def spin(label, back):
    a.label(label)
    emit(poll_rd() + ["s_waitcnt lgkmcnt(0)", f"v_readfirstlane_b32 s{sCv}, {vr(v.tmp)}", f"s_cmp_ge_u32 s{sCv}, s{sTgtC}",
         f"s_cbranch_scc0 {label}"])
    if back: a(f"s_branch {back}")
HPRE = FL("hpre")
def with_sync(st, u, first, pr):
    st = list(st)
    RAISE = int(OPT("raise", "24"))
    if not HPRE:
        RD = len(st) - int(OPT("rdback", "10")); CHK = len(st); Rh = []
    else:
        Rh = pieces((u + 1) & 7, 0)["Rh"]
        RD = int(OPT("rdpos", "16")); CHK = int(OPT("chk", "32"))
        if first: RD, CHK = len(st) - 30, len(st) - 8
    pre, post = st[:CHK], st[CHK:]
    pre = pre[:RD] + poll_rd() + pre[RD:]
    if RAISE >= 0: pre = pre[:RAISE] + prio(pr[2]) + pre[RAISE:]
    if first:
        post = post + Rh
    else:
        out = []; q = list(Rh)
        for x in post:
            out.append(x)
            if q and x.startswith("v_rcp"): out.append(q.pop(0))
        post = out + q
    return pre, post

def m_phase(u):
    c = pieces(u, 0); G, Rh, Rt, S, Z = c["G"], c["Rh"], c["Rt"], c["S"], c["G2"]
    da, db, fin_ = c["da"], c["db"], c["fin"]
    tg = [f"s_add_u32 s{sTgtR}, s{sTgtR}, 4", f"s_bitcmp1_b32 s{sEND}, {u}", f"s_cselect_b32 s{sTgtC}, -1, s{sTgtR}"]
    s = Rh[:4] + [S[0]] + Rh[4:6] + [S[1]] + Rh[6:]
    ORD = OPT("mord", "a")
    if ORD == "a":
        s += [c["ix"], da[0], c["Rp"], da[1], G[0]] + fin_ + [G[1], db[0], Rt[0], db[1], Rt[2], G[2], Rt[1], Rt[3], c["Ri"], G[3]]
        s += c["Rm"] + tg + [G[4], G[5], G[6], G[7], Z[0], Z[1]]
    elif ORD == "b":
        s += [c["Rp"], Rt[0], G[0]] + fin_ + [G[1], c["ix"], da[0], Rt[2], da[1], G[2], db[0], Rt[1], db[1], Rt[3], G[3]]
        s += c["Rm"] + [c["Ri"], G[4]] + tg + [G[5], G[6], G[7], Z[0], Z[1]]
    elif ORD == "c":
        s += [c["ix"], da[0], c["Rp"], da[1], db[0], Rt[0], db[1], G[0]] + fin_ + [G[1], Rt[2], Rt[1], Rt[3], G[2], c["Ri"]] + c["Rm"] + [G[3]]
        s += tg + [G[4], G[5], G[6], G[7], Z[0], Z[1]]
    return s

def v_prep(vp):
    H = v.H; X = v.X; Y = v.Y; BR = v.BR
    D0 = vr(H, 16); D1 = vr(H + 16, 16)
    e = [f"v_exp_f32 {vr(Y+i)}, {vr(Y+i)}" for i in range(16)]
    d = [f"v_add_f32 {vr(Y+i)}, 1.0, {vr(Y+i)}" for i in range(16)]
    r = [f"v_rcp_f32 {vr(Y+i)}, {vr(Y+i)}" for i in range(16)]
    c = [f"v_cvt_pk_bf16_f32 {vr(Y+k)}, {vr(Y+2*k)}, {vr(Y+2*k+1)}" for k in range(8)]
    fr = lambda T, f: (X if T < 2 else BR) + 8 * (T & 1) + 4 * f
    rd = [f"ds_read_b128 {vr(fr(T, f), 4)}, {vr(v.aDiag+f)} offset:{528*T}" for T in range(4) for f in range(2)]
    def P(T):
        D = D0 if T % 2 == 0 else D1
        m = [f"{MF32} {D}, {vr(fr(T,0),4)}, {vr(v.WD+8*T,4)}, {vr(v.WAC+16*T,16)}",
             f"{MF32} {D}, {vr(fr(T,1),4)}, {vr(v.WD+8*T+4,4)}, {D}"]
        if FL("pprio"): m = [f"s_setprio 3\n{x}\ns_setprio {vp}" for x in m]
        return m
    def cv(T):
        D = H if T % 2 == 0 else H + 16
        return [f"v_cvt_pk_bf16_f32 {vr(v.WE + 8*T + i)}, {vr(D+2*i)}, {vr(D+2*i+1)}" for i in range(8)]
    p = prep_parts()
    P0, P1, P2, P3 = P(0), P(1), P(2), P(3)
    s = e[0:8] + ["s_waitcnt lgkmcnt(4)"]
    s += [P0[0]] + e[8:11] + [P0[1]] + e[11:14] + [P1[0]] + e[14:16] + d[0:2] + [P1[1]] + d[2:16]
    s += cv(0) + cv(1) + r[:8] + c[:4]
    s += ["s_waitcnt lgkmcnt(0)", P2[0]] + r[8:11] + [P2[1]] + r[11:14] + [P3[0]] + r[14:16] + [P3[1]]
    s += p["rb"] + c[4:] + p["qw"][1:] + p["ptr"] + cv(2) + cv(3)
    return s

def diag_reads():
    X = v.X; BR = v.BR
    fr = lambda T, f: (X if T < 2 else BR) + 8 * (T & 1) + 4 * f
    rd = [f"ds_read_b128 {vr(fr(T, f), 4)}, {vr(v.aDiag+f)} offset:{528*T}" for T in range(4) for f in range(2)]
    return rd[:4], rd[4:], f"ds_write_b16 {vr(v.diagW)}, {vr(v.Q)}"

INLOOP = True
def ilog(u):
    if PROF:
        emit(pm(3)); a("s_waitcnt lgkmcnt(0)"); emit(pacc())
    if FL("ilog"):
        a("s_memtime s[80:81]"); a("s_waitcnt lgkmcnt(0)")
        a("s_sub_u32 s83, s80, s82"); a("s_mov_b32 s82, s80")
        a("s_min_u32 m0, s84, 11")
        if u % 2 == 0:
            a("s_movreld_b32 s56, s83")
        else:
            a("s_movrels_b32 s85, s56"); a("s_lshl_b32 s83, s83, 16"); a("s_or_b32 s85, s85, s83")
            a("s_movreld_b32 s56, s85"); a("s_add_u32 s84, s84, 1")

def vsync(st, pr):
    st = list(st)
    RAISE = int(OPT("raise", "24"))
    k = len(st) - int(OPT("rdback", "10"))
    st = st[:k] + poll_rd() + st[k:]
    if RAISE >= 0: st = st[:RAISE] + prio(pr[2]) + st[RAISE:]
    return st

def loop(L, pr):
    VMW = "s_waitcnt lgkmcnt(0)" if FL("novm") else "s_waitcnt vmcnt(8)"
    emit(prio(pr[0]))
    for u in range(8):
        a.label(f"{L}b{u}")
        emit(pm(0))
        a.begin_auto()
        emit(m_phase(u))
        a.end_auto()
        a(f"s_bitcmp1_b32 s{sFIRST}, {u+1}")
        a(f"s_cbranch_scc1 {L}first{u}")
        a(f"s_bitcmp1_b32 s{sLAST}, {u}")
        a(VMW)
        emit(arrive())
        a(f"s_cbranch_scc1 {L}epi{u}")
        a.label(f"{L}done{u}")
        emit(pm(1))
        emit(prio(pr[1]))
        emit(vsync(sig_stream(), pr))
        a.label(f"{L}vj{u}")
        emit(pm(2))
        if u == 7:
            a(f"v_add_u32 {vr(v.idxA)}, 512, {vr(v.idxA)}")
            a(f"v_add_u32 {vr(v.maskA)}, 512, {vr(v.maskA)}")
            a(f"s_lshr_b64 {sp(sFIRST)}, {sp(sFIRST)}, 8")
            a(f"s_lshr_b64 {sp(sLAST)}, {sp(sLAST)}, 8")
            a(f"s_lshr_b64 {sp(sEND)}, {sp(sEND)}, 8")
        a("s_waitcnt lgkmcnt(0)")
        a(f"v_readfirstlane_b32 s{sCv}, {vr(v.tmp)}")
        emit(prio(pr[0]) or ["s_nop 0"])
        a(f"s_cmp_ge_u32 s{sCv}, s{sTgtC}")
        a(f"s_cbranch_scc0 {L}slow{u}")
        ilog(u)
        if u == 7: a(f"s_branch {L}b0")
    for u in range(8):
        a.label(f"{L}first{u}")
        r01, r23, qw = diag_reads()
        emit(r01 + [qw])
        a(f"s_bitcmp1_b32 s{sLAST}, {u}")
        a(VMW)
        emit(arrive())
        emit(r23)
        a(f"s_cbranch_scc1 {L}fepi{u}")
        a.label(f"{L}fdone{u}")
        emit(prio(pr[1]))
        a.begin_auto()
        emit(["s_waitcnt lgkmcnt(6)" if False else "; skip"] + vsync(v_prep(pr[1]), pr))
        a.end_auto()
        a(f"s_branch {L}vj{u}")
    for u in range(8):
        a.label(f"{L}epi{u}")
        epilogue()
        a(f"s_branch {L}done{u}")
        a.label(f"{L}fepi{u}")
        epilogue()
        a(f"s_branch {L}fdone{u}")
    for u in range(8):
        a.label(f"{L}slow{u}")
        a(f"s_cmp_eq_u32 s{sTgtC}, -1")
        a(f"s_cbranch_scc1 {L}stub{u}")
        a.label(f"{L}spin{u}")
        emit(poll_rd() + ["s_waitcnt lgkmcnt(0)", f"v_readfirstlane_b32 s{sCv}, {vr(v.tmp)}",
             f"s_cmp_ge_u32 s{sCv}, s{sTgtC}", f"s_cbranch_scc0 {L}spin{u}"])
        a(f"s_branch {L}b{(u+1)&7}")
    for u in range(8):
        a.label(f"{L}stub{u}")
        a(f"s_mov_b32 s{sSb}, {((u-1)&7)*8192}")
        a(f"s_mov_b32 s{sSc}, {u*8192}")
        a(f"s_mov_b32 s{sPb}, {((u+1)&1)*256}")
        a(f"s_mov_b32 s{sPc}, {(u&1)*256}")
        a(f"s_lshr_b64 {sp(sLAST)}, {sp(sLAST)}, {u+1 if u < 7 else 0}") if u < 7 else None
        a(f"s_branch L_tail")
sSb, sSc, sMo, sPb, sPc = [sT0 + i for i in range(5)]
PA = [int(x) for x in OPT("pa", "302")]
PB = [int(x) for x in OPT("pb", "302")]
TWO = PA != PB
if TWO:
    a(f"s_cmp_eq_u32 s{sFav}, {OPT('fav', '1')}")
    a("s_cbranch_scc1 LA_entry")
    loop("LB_", PB)
    a.label("LA_entry")
    loop("LA_", PA)
else:
    loop("L_", PA)
INLOOP = False

def tail_g2(sS, part_reg):
    H = v.H; X = v.X
    for k in range(4): a(f"v_add_u32 {vr(H+20+k)}, s{sS}, {vr(v.aT+k)}")
    for du in range(2):
        for dt in range(2):
            a(f"ds_read_b64_tr_b16 {vr(X + 4*dt + 2*du, 2)}, {vr(H+20 + 2*du + dt)}")
    a(f"ds_read_b128 {vr(X+8,4)}, {vr(part_reg)}")
    for dt in range(2):
        a(f"{MF16} {vr(v.D2+4*dt,4)}, {vr(X+8,4)}, {vr(X+4*dt,4)}, {vr(v.D2+4*dt,4)}")
H = v.H
a.label("L_tail")
a(f"s_mov_b32 s{sTgtC}, s{sTgtR}")
emit(prio(2))
spin("L_tspin0", None)
a.begin_auto()
emit(score_mfma())
a(f"v_add_u32 {vr(H+24)}, s{sPc}, {vr(v.partW)}")
emit(fin(0, H+24))
a(f"v_add_u32 {vr(H+26)}, s{sPb}, {vr(v.partR)}")
tail_g2(sSb, H+26)
a.end_auto()
a(f"s_bitcmp1_b32 s{sLAST}, 0")
a(f"s_cbranch_scc0 L_t1")
epilogue()
a.label("L_t1")
a(f"s_add_u32 s{sTgtC}, s{sTgtC}, 4")
emit(arrive())
spin("L_tspin", None)
a.begin_auto()
a(f"v_add_u32 {vr(H+26)}, s{sPc}, {vr(v.partR)}")
tail_g2(sSc, H+26)
a.end_auto()
epilogue()
if DEBUG_TS:
    ts(5)
    a(f"s_load_dwordx2 {sp(sTgt)}, s[0:1], 72")
    a("s_waitcnt vmcnt(0) lgkmcnt(0)")
    a(f"s_mov_b32 s{sTgt+2}, 0x100000")
    a(f"s_mov_b32 s{sTgt+3}, 0x00020000")
    a(f"s_lshl_b32 s{sT0+2}, s2, 2")
    a(f"s_add_u32 s{sT0+2}, s{sT0+2}, s{sW}")
    a(f"s_lshl_b32 s{sT0+2}, s{sT0+2}, 5")
    a(f"v_mov_b32 v0, s{sT0+2}")
    for k in range(6):
        a(f"v_mov_b32 v{4+k}, s{TSREG[k]}")
    a(f"s_lshl_b32 s3, s3, 8")
    a(f"s_or_b32 s3, s3, s{sNT}")
    a(f"v_mov_b32 v10, s3")
    a(f"s_getreg_b32 s{sT0+3}, hwreg(HW_REG_HW_ID)")
    a(f"s_getreg_b32 s{sT0+4}, hwreg(HW_REG_XCC_ID)")
    a(f"s_lshl_b32 s{sT0+4}, s{sT0+4}, 16")
    a(f"s_and_b32 s{sT0+3}, s{sT0+3}, 0xffff")
    a(f"s_or_b32 s{sT0+3}, s{sT0+3}, s{sT0+4}")
    a(f"v_mov_b32 v11, s{sT0+3}")
    a("s_mov_b64 exec, 1")
    a(f"buffer_store_dwordx4 v[4:7], v0, {srd(sTgt)}, 0 offen")
    a(f"buffer_store_dwordx4 v[8:11], v0, {srd(sTgt)}, 0 offen offset:16")
    if FL("ilog"):
        a("v_lshlrev_b32 v0, 1, v0"); a("v_add_u32 v0, 0x40000, v0")
        for k in range(12): a(f"v_mov_b32 v{12+k}, s{56+k}")
        a("v_mov_b32 v24, s86"); a("v_mov_b32 v25, s87")
        for k in range(4): a(f"buffer_store_dwordx4 v[{12+4*k}:{15+4*k}], v0, {srd(sTgt)}, 0 offen offset:{16*k}")
a("s_waitcnt vmcnt(0)")
a.label("L_end")
a("s_endpgm")

body_txt = a.finalize()
hdr = open("cdna_kernels/" + NAME + ".s.ref").read()
head = hdr[:hdr.index("; @launch")]
out = head + f"""; @launch grid=(256,1,1) block=(512,1,1) lds={LDS_BYTES}
.amdgcn_target "amdgcn-amd-amdhsa--gfx950"
.text
.globl {NAME}_kernel
.p2align 8
.type {NAME}_kernel,@function
{NAME}_kernel:
{body_txt}
.section .rodata,"a"
.p2align 6
.amdhsa_kernel {NAME}_kernel
  .amdhsa_next_free_vgpr {NVGPR}
  .amdhsa_next_free_sgpr 102
  .amdhsa_accum_offset 256
  .amdhsa_group_segment_fixed_size 0
  .amdhsa_kernarg_size 80
  .amdhsa_user_sgpr_count 2
  .amdhsa_user_sgpr_kernarg_segment_ptr 1
  .amdhsa_system_sgpr_workgroup_id_x 1
.end_amdhsa_kernel
"""
outp = [x for x in sys.argv[1:] if not x.startswith("--")]
path = outp[0] if outp else "cdna_kernels/" + NAME + ".s"
open(path, "w").write(out)
print("wrote", path, "lines", out.count("\n"), "nops", a.padded)
```

```python
import sys
from asmlib import Asm

NAME = "standalone__sequential_behavior_din__recsys"
DEBUG_TS = "--ts" in sys.argv
FL = lambda x: ("--" + x) in sys.argv
def OPT(name, default):
    for x in sys.argv:
        if x.startswith("--" + name + "="): return x.split("=", 1)[1]
    return default

MISC0 = 131072
IDX = 0
MASKL = 3584
PART = 7232
BIAS = 8000
DIAG = 12096
CNT = 16320
LDS_BYTES = 163840
assert CNT + 32 <= 16384

class V: pass
v = V()
def vr(a, n=1):
    return f"v{a}" if n == 1 else f"v[{a}:{a+n-1}]"
v.aH = 0; v.aT = 4; v.idxA = 8; v.idx = 9; v.lane_off = 10; v.maskA = 11
v.m0 = 12; v.m1 = 13; v.partW = 14; v.partR = 15; v.aDiag = 16; v.diagW = 18
v.biasA = 19; v.outA = 20; v.tmp = 21; v.b2c = 22; v.Q = 24; v.D3 = 28; v.D2 = 32
v.A3 = 40; v.BR = 48; v.Y = 64; v.X = 80; v.Y0 = 64; v.Y1 = 80; v.H = 96; v.WAC = 128; v.WD = 192; v.WE = 224
NVGPR = 256
v.tmp2 = v.D2

sHist = 4; sW1 = 8; sOut = 12; sTgt = 16; sMask = 20; sB1 = 24; sW2 = 28; sB2 = 32
sEND = 34; sW = 36; sWoff = 37; sG = 38; sNT = 39; sFIRST = 40; sLAST = 42
sDelta = 44; sMB = 45; sSel = 46; sC = 48; sB2v = 49
sT0 = 50
sP = 70
sBal = 80
sRet = 94
sTgtC = 93
sTgtR = 92
sCv = 55
sFav = 38
CTR = 512

a = Asm()
TSREG = {0: 96, 1: 97, 2: 98, 3: 99, 4: 100, 5: 101}
TSMAP = dict(zip(OPT("tsmap", "B1,B2a,B2b,B4").split(","), (1, 2, 3, 4)))
def ts(k):
    if not DEBUG_TS: return
    name = k
    if isinstance(k, str) and k not in TSMAP and k != "B4": return
    slot = TSMAP.get(k, None) if isinstance(k, str) else k
    if slot is not None:
        a(f"{'s_memtime' if FL('tscyc') else 's_memrealtime'} s[{sT0+18}:{sT0+19}]")
        a("s_waitcnt lgkmcnt(0)")
        a(f"s_mov_b32 s{TSREG[slot]}, s{sT0+18}")
    if name == "B4" or name == 5:
        a(f"s_memtime s[{sT0+18}:{sT0+19}]")
        a("s_waitcnt lgkmcnt(0)")
        if name == "B4": a(f"s_mov_b32 s3, s{sT0+18}")
        else: a(f"s_sub_u32 s3, s{sT0+18}, s3")

PROF = FL("prof")
def pm(k):
    return [f"s_memtime s[{80+2*k}:{81+2*k}]"] if PROF else []
def pacc():
    if not PROF: return []
    return ["s_sub_u32 s91, s82, s80", "s_add_u32 s97, s97, s91", "s_sub_u32 s91, s84, s82", "s_add_u32 s98, s98, s91",
            "s_sub_u32 s91, s86, s84", "s_add_u32 s99, s99, s91"]
def srd(r): return f"s[{r}:{r+3}]"
def sp(r): return f"s[{r}:{r+1}]"

def dma_a(voff, srdreg, soff, slot, nt):
    f = " nt" if nt else ""
    return [f"s_add_u32 m0, s{sWoff}, {slot*8192}",
            f"buffer_load_dwordx4 {vr(voff)}, {srd(srdreg)}, {soff} offen{f} lds"]
def dma_b(voff, srdreg, soff, slot, nt):
    f = " nt" if nt else ""
    return [f"s_add_u32 m0, s{sWoff}, {slot*8192 + 4096 - 128}",
            f"buffer_load_dwordx4 {vr(voff)}, {srd(srdreg)}, {soff} offen offset:128{f} lds"]
INLOOP = False
def emit(lst):
    for x in [y for z in lst for y in z.split("\n")]:
        if INLOOP and FL("nodma") and x.startswith("buffer_load"): continue
        if INLOOP and FL("nosig") and x.startswith(("v_exp", "v_rcp", "v_add_f32")): continue
        if INLOOP and FL("nog1") and x.startswith("v_mfma_f32_32x32"): continue
        if x.startswith("; skip"): continue
        a(x)
def dma(voff, srdreg, soff, slot, nt):
    emit(dma_a(voff, srdreg, soff, slot, nt)); emit(dma_b(voff, srdreg, soff, slot, nt))

MF32 = "v_mfma_f32_32x32x16_bf16"
MF16 = "v_mfma_f32_16x16x32_bf16"
NT_HIST = not FL("nont")

a("s_cmp_ge_u32 s2, 256")
a("s_cbranch_scc1 L_end")
ts(0)
a(f"s_load_dwordx2 {sp(sMask)}, s[0:1], 16")
a(f"s_load_dwordx2 {sp(sW1)}, s[0:1], 24")
a(f"s_load_dwordx2 {sp(sTgt)}, s[0:1], 0")
a(f"s_load_dwordx2 {sp(sB1)}, s[0:1], 32")
a(f"s_load_dwordx2 {sp(sW2)}, s[0:1], 40")
a(f"s_load_dwordx2 {sp(sB2)}, s[0:1], 48")
a(f"s_load_dwordx2 {sp(sHist)}, s[0:1], 8")
a(f"s_load_dwordx2 {sp(sOut)}, s[0:1], 56")
tLane, tHi, tM, tQ, tN4, tA, tB, tC, tD, tE, tF, tG = [v.BR + i for i in range(12)]
a(f"v_lshrrev_b32 {vr(tA)}, 6, v0")
a(f"v_and_b32 {vr(tLane)}, 63, v0")
a(f"v_readfirstlane_b32 s{sT0}, {vr(tA)}")
a(f"v_and_b32 v0, 255, v0")
a(f"v_lshrrev_b32 {vr(tHi)}, 5, {vr(tLane)}")
a(f"v_and_b32 {vr(tM)}, 31, {vr(tLane)}")
a(f"v_lshrrev_b32 {vr(tQ)}, 4, {vr(tLane)}")
a(f"v_and_b32 {vr(tN4)}, 15, {vr(tLane)}")
a(f"s_and_b32 s{sW}, s{sT0}, 3")
a(f"s_lshr_b32 s{sG}, s{sT0}, 2")
a(f"s_lshl_b32 s2, s2, 1")
a(f"s_add_u32 s2, s2, s{sG}")
a(f"s_lshl_b32 s{sWoff}, s{sW}, 10")
a(f"s_lshl_b32 s{sT0}, s{sG}, 16")
a(f"s_add_u32 s{sWoff}, s{sWoff}, s{sT0}")
a(f"s_lshl_b32 s{sMB}, s{sG}, 14")
a(f"s_add_u32 s{sMB}, s{sMB}, {MISC0}")
a(f"s_mov_b32 s{sC}, 0xBFB8AA3B")
a(f"v_lshlrev_b32 {vr(tA)}, 3, {vr(tLane)}")
a(f"s_mul_i32 s{sT0}, s{sW}, 800")
a(f"v_add_u32 {vr(tA)}, s{sT0}, {vr(tA)}")
a(f"v_mov_b32 {vr(tB)}, 0x10000")
a(f"v_cmp_gt_u32 vcc, 50, {vr(tLane)}")
a(f"v_cndmask_b32 {vr(tA)}, {vr(tB)}, {vr(tA)}, vcc")
a(f"v_lshrrev_b32 {vr(tB)}, 3, {vr(tLane)}")
a(f"s_lshl_b32 s{sT0}, s{sW}, 3")
a(f"v_add_u32 {vr(tB)}, s{sT0}, {vr(tB)}")
a(f"v_and_b32 {vr(tD)}, 7, {vr(tLane)}")
a(f"v_and_b32 {vr(tC)}, 2, {vr(tB)}")
a(f"v_lshlrev_b32 {vr(tC)}, 1, {vr(tC)}")
a(f"v_xor_b32 {vr(tC)}, {vr(tC)}, {vr(tD)}")
a(f"v_lshlrev_b32 {vr(tC)}, 4, {vr(tC)}")
v.wv = v.Q
a(f"v_lshl_add_u32 {vr(v.wv)}, {vr(tB)}, 8, {vr(tC)}")
a(f"s_mul_i32 s{sT0}, s2, 3200")
a("s_waitcnt lgkmcnt(0)")
a(f"s_add_u32 s{sMask}, s{sMask}, s{sT0}")
a(f"s_addc_u32 s{sMask+1}, s{sMask+1}, 0")
a(f"s_mov_b32 s{sMask+2}, 3200")
a(f"s_mov_b32 s{sMask+3}, 0x00020000")
ts("karg")
MK = v.Y1
a(f"buffer_load_dwordx2 {vr(MK,2)}, {vr(tA)}, {srd(sMask)}, 0 offen")
a(f"buffer_load_dwordx2 {vr(MK+2,2)}, {vr(tA)}, {srd(sMask)}, 0 offen offset:400")
a(f"s_load_dword s{sB2v}, {sp(sB2)}, 0")
a(f"s_mov_b32 s{sW1+2}, 131072")
a(f"s_mov_b32 s{sW1+3}, 0x00020000")
sWs = 79; sWb = 3
a(f"s_lshl_b32 s{sWb}, s{sG}, 16")
def wdma(s):
    return [[f"s_add_u32 s{sWs}, s{sWb}, {s*8192}"] + dma_a(v.wv, sW1, f"s{sWs}", s, False),
            dma_b(v.wv, sW1, f"s{sWs}", s, False)]
WD_ = [x for s_ in range(8) for x in wdma(s_)]
def cut(mark):
    blk = a.lines[mark:]
    del a.lines[mark:]
    return blk
def interleave(chunks, blk):
    n = len(chunks)
    pos = [int(len(blk) * (k + 0.3) / n) for k in range(n)] if n else []
    k = 0
    full = True
    for i, l in enumerate(blk):
        ok = full and not (l.startswith(("s_addc", "s_cselect", "s_cbranch", "s_movrels")) or l.endswith(":"))
        while k < n and i >= pos[k] and ok:
            for x in chunks[k]: a(x)
            k += 1
        a(l)
        if l.startswith("s_mov_b64 exec"): full = l.endswith("-1")
    while k < n:
        for x in chunks[k]: a(x)
        k += 1
NA = 16
a(f"s_lshl_b32 s{sT0}, s2, 11")
a(f"s_add_u32 s{sTgt}, s{sTgt}, s{sT0}")
a(f"s_addc_u32 s{sTgt+1}, s{sTgt+1}, 0")
a(f"s_mov_b32 s{sTgt+2}, 2048")
a(f"s_mov_b32 s{sTgt+3}, 0x00020000")
a(f"s_mov_b32 s{sB1+2}, 256")
a(f"s_mov_b32 s{sB1+3}, 0x00020000")
a(f"s_mov_b32 s{sW2+2}, 256")
a(f"s_mov_b32 s{sW2+3}, 0x00020000")
a(f"s_lshl_b32 s{sT0}, s{sW}, 10")
a(f"s_add_u32 s{sT0}, s{sT0}, s{sMB}")
a(f"s_add_u32 m0, s{sT0}, {BIAS}")
a(f"s_cmp_ge_u32 s{sW}, 2")
a("s_cbranch_scc1 L_stg_bw")
a(f"s_lshl_b32 s{sT0}, s{sW}, 2")
a(f"v_add_u32 {vr(tA)}, s{sT0}, {vr(tQ)}")
a(f"v_xor_b32 {vr(tC)}, {vr(tA)}, {vr(tN4)}")
a(f"v_lshlrev_b32 {vr(tC)}, 4, {vr(tC)}")
a(f"v_lshl_add_u32 {vr(tC)}, {vr(tA)}, 8, {vr(tC)}")
a(f"buffer_load_dwordx4 {vr(tC)}, {srd(sTgt)}, 0 offen lds")
a("s_branch L_stg_done")
a.label("L_stg_bw")
a(f"v_lshlrev_b32 {vr(tC)}, 4, {vr(tLane)}")
a(f"s_cmp_eq_u32 s{sW}, 2")
a("s_cbranch_scc0 L_stg_w2")
a(f"buffer_load_dwordx4 {vr(tC)}, {srd(sB1)}, 0 offen lds")
a("s_branch L_stg_done")
a.label("L_stg_w2")
a(f"buffer_load_dwordx4 {vr(tC)}, {srd(sW2)}, 0 offen lds")
a.label("L_stg_done")
NSTG = 1
wv8 = sT0 + 2
if FL("tw"):
    a(f"s_lshr_b32 s{sT0}, s2, 1")
    a(f"s_lshr_b32 s{sT0+1}, s{sT0}, 3")
    a(f"s_xor_b32 s{sT0}, s{sT0}, s{sT0+1}")
    a(f"s_lshr_b32 s{sT0+1}, s{sT0+1}, 2")
    a(f"s_xor_b32 s{sT0}, s{sT0}, s{sT0+1}")
    a(f"s_and_b32 s{sT0}, s{sT0}, 7")
    a(f"s_lshl_b32 s{sT0}, s{sT0}, 14")
    a(f"s_lshl_b32 s{sT0+1}, s{sG}, 13")
    a(f"s_add_u32 s{sT0}, s{sT0}, s{sT0+1}")
    a(f"s_lshl_b32 s{sT0+1}, s{sW}, 11")
    a(f"s_add_u32 s{sT0}, s{sT0}, s{sT0+1}")
    a(f"v_lshlrev_b32 {vr(tC)}, 7, {vr(tN4)}")
    a(f"s_mov_b64 exec, 0xffff")
    a(f"buffer_load_dword {vr(v.b2c)}, {vr(tC)}, {srd(sW1)}, s{sT0} offen")
    a(f"s_mov_b64 exec, -1")
    NSTG += 1
a(f"s_mul_i32 s{sT0}, s2, {8*51200}")
a(f"s_add_u32 s{sHist}, s{sHist}, s{sT0}")
a(f"s_addc_u32 s{sHist+1}, s{sHist+1}, 0")
a(f"s_mov_b32 s{sHist+2}, {8*51200}")
a(f"s_mov_b32 s{sHist+3}, 0x00020000")
a(f"s_lshl_b32 s{sT0}, s2, 11")
a(f"s_add_u32 s{sOut}, s{sOut}, s{sT0}")
a(f"s_addc_u32 s{sOut+1}, s{sOut+1}, 0")
a(f"s_mov_b32 s{sOut+2}, 256")
a(f"s_mov_b32 s{sOut+3}, 0x00020000")

if FL("th"):
    a(f"s_lshl_b32 s{sT0}, s{sW}, 3")
    a(f"v_add_u32 {vr(tC)}, s{sT0}, {vr(tLane)}")
    a(f"v_lshlrev_b32 {vr(tC)}, 14, {vr(tC)}")
    a(f"s_mov_b64 exec, 0xff")
    a(f"buffer_load_dword {vr(v.b2c+1)}, {vr(tC)}, {srd(sHist)}, 0 offen")
    a(f"s_mov_b64 exec, -1")
    NSTG += 1
def addm(dst, const, src):
    a(f"s_add_u32 s{sT0+9}, s{sMB}, {const}")
    a(f"v_add_u32 {vr(dst)}, s{sT0+9}, {vr(src)}")

tH, tI = v.BR + 12, v.BR + 13
sRB = sT0 + 8
sgT = v.Y0
aW = v.D3
tBW = v.tmp

def blk_fill():
    F4 = v.H
    a(f"v_lshlrev_b32 {vr(tA)}, 4, v0")
    addm(tA, 0, tA)
    a(f"v_mov_b32 {vr(tB)}, 0")
    a(f"v_cmp_gt_u32 vcc, 224, v0")
    for i in range(4, 8): a(f"v_mov_b32 {vr(F4+i)}, 0")
    a(f"v_mov_b32 {vr(tC)}, -1")
    a(f"v_cndmask_b32 {vr(F4)}, {vr(tB)}, {vr(tC)}, vcc")
    for i in range(1, 4): a(f"v_mov_b32 {vr(F4+i)}, {vr(F4)}")
    a(f"ds_write_b128 {vr(tA)}, {vr(F4,4)}")
    a(f"v_add_u32 {vr(tC)}, 4096, {vr(tA)}")
    a(f"s_add_u32 s{sT0}, s{sMB}, {BIAS-16}")
    a(f"v_min_u32 {vr(tC)}, s{sT0}, {vr(tC)}")
    a(f"ds_write_b128 {vr(tC)}, {vr(F4+4,4)}")
    a(f"ds_write_b128 {vr(tA)}, {vr(F4+4,4)} offset:{DIAG}")
    a(f"v_add_u32 {vr(tC)}, {DIAG+4096}, {vr(tA)}")
    a(f"s_add_u32 s{sT0}, s{sMB}, {DIAG+4224-16}")
    a(f"v_min_u32 {vr(tC)}, s{sT0}, {vr(tC)}")
    a(f"ds_write_b128 {vr(tC)}, {vr(F4+4,4)}")

def phi(dst, r, t):
    a(f"v_lshrrev_b32 {vr(dst)}, 2, {vr(r)}")
    a(f"v_and_b32 {vr(dst)}, 4, {vr(dst)}")
    a(f"v_lshrrev_b32 {vr(t)}, 1, {vr(r)}")
    a(f"v_and_b32 {vr(t)}, 3, {vr(t)}")
    a(f"v_or_b32 {vr(dst)}, {vr(dst)}, {vr(t)}")

def blk_dma():
    a(f"v_lshrrev_b32 {vr(tB)}, 3, {vr(tLane)}")
    a(f"s_lshl_b32 s{sT0}, s{sW}, 3")
    a(f"v_add_u32 {vr(tB)}, s{sT0}, {vr(tB)}")
    phi(tC, tB, tD)
    a(f"v_and_b32 {vr(tD)}, 7, {vr(tLane)}")
    a(f"v_xor_b32 {vr(tC)}, {vr(tC)}, {vr(tD)}")
    a(f"v_lshlrev_b32 {vr(v.lane_off)}, 4, {vr(tC)}")
    a(f"v_lshlrev_b32 {vr(v.idxA)}, 1, {vr(tB)}")
    addm(v.idxA, IDX, v.idxA)

def blk_cd():
    a(f"v_and_b32 {vr(tH)}, 3, {vr(tN4)}")
    a(f"v_lshrrev_b32 {vr(tI)}, 1, {vr(tH)}")
    a(f"s_and_b32 s{sT0}, s{sW}, 1")
    a(f"s_lshl_b32 s{sT0}, s{sT0}, 2")
    a(f"v_or_b32 {vr(tI)}, s{sT0}, {vr(tI)}")
    a(f"v_and_b32 {vr(tH)}, 1, {vr(tH)}")
    a(f"v_lshlrev_b32 {vr(tH)}, 3, {vr(tH)}")
    a(f"s_lshr_b32 s{sT0+1}, s{sW}, 1")
    a(f"s_lshl_b32 s{sT0+1}, s{sT0+1}, 12")
    a(f"v_add_u32 {vr(tH)}, s{sT0+1}, {vr(tH)}")

def blk_aW():
    a(f"v_and_b32 {vr(tE)}, 1, {vr(tQ)}")
    a(f"v_lshl_or_b32 {vr(tD)}, {vr(tE)}, 1, {vr(tI)}")
    a(f"v_lshrrev_b32 {vr(tA)}, 2, {vr(tN4)}")
    a(f"v_lshl_add_u32 {vr(tB)}, {vr(tHi)}, 3, {vr(tA)}")
    a(f"v_and_b32 {vr(tF)}, 2, {vr(tA)}")
    a(f"v_lshlrev_b32 {vr(tF)}, 1, {vr(tF)}")
    a(f"v_xor_b32 {vr(tF)}, {vr(tF)}, {vr(tD)}")
    a(f"v_lshl_add_u32 {vr(tF)}, {vr(tF)}, 4, {vr(tH)}")
    for f in range(2):
        for u in range(2):
            a(f"v_add_u32 {vr(tE)}, {16*f + 4*u}, {vr(tB)}")
            a(f"v_lshl_add_u32 {vr(aW + 2*f + u)}, {vr(tE)}, 7, {vr(tF)}")

def blk_aH():
    a(f"s_lshl_b32 s{sRB}, s{sG}, 16")
    phi(tA, tM, tB)
    a(f"v_xor_b32 {vr(tA)}, {vr(tA)}, {vr(tHi)}")
    a(f"v_lshlrev_b32 {vr(tB)}, 7, {vr(tM)}")
    a(f"v_add_u32 {vr(tB)}, s{sRB}, {vr(tB)}")
    for k in range(4):
        a(f"v_xor_b32 {vr(tC)}, {2*k}, {vr(tA)}")
        a(f"v_lshl_add_u32 {vr(v.aH+k)}, {vr(tC)}, 4, {vr(tB)}")

def blk_aT():
    a(f"s_lshl_b32 s{sRB}, s{sG}, 16")
    a(f"v_lshrrev_b32 {vr(tA)}, 2, {vr(tN4)}")
    a(f"v_and_b32 {vr(tB)}, 1, {vr(tA)}")
    a(f"v_lshlrev_b32 {vr(tB)}, 4, {vr(tB)}")
    a(f"v_lshrrev_b32 {vr(tA)}, 1, {vr(tA)}")
    a(f"v_add_u32 {vr(tB)}, {vr(tA)}, {vr(tB)}")
    a(f"v_lshl_add_u32 {vr(tB)}, {vr(tQ)}, 2, {vr(tB)}")
    a(f"v_add_u32 {vr(tC)}, s{sRB}, {vr(tH)}")
    for u in range(2):
        a(f"v_add_u32 {vr(tE)}, {2*u}, {vr(tB)}")
        phi(tF, tE, tG)
        a(f"v_xor_b32 {vr(tF)}, {vr(tF)}, {vr(tI)}")
        a(f"v_lshl_add_u32 {vr(tE)}, {vr(tE)}, 7, {vr(tC)}")
        for dt in range(2):
            a(f"v_xor_b32 {vr(tG)}, {2*dt}, {vr(tF)}")
            a(f"v_lshl_add_u32 {vr(v.aT + 2*u + dt)}, {vr(tG)}, 4, {vr(tE)}")

def blk_part():
    a(f"s_lshl_b32 s{sT0}, s{sW}, 6")
    a(f"v_lshlrev_b32 {vr(tA)}, 2, {vr(tN4)}")
    a(f"v_add_u32 {vr(tA)}, s{sT0}, {vr(tA)}")
    addm(v.partW, PART, tA)
    a(f"v_and_b32 {vr(tA)}, 3, {vr(tN4)}")
    a(f"v_lshlrev_b32 {vr(tA)}, 6, {vr(tA)}")
    a(f"v_lshl_add_u32 {vr(tA)}, {vr(tQ)}, 4, {vr(tA)}")
    addm(v.partR, PART, tA)
    a(f"v_lshlrev_b32 {vr(tA)}, 1, {vr(tN4)}")
    addm(v.maskA, MASKL, tA)

def blk_diag():
    a(f"v_and_b32 {vr(tA)}, 0x13, {vr(tM)}")
    a(f"v_lshrrev_b32 {vr(tB)}, 1, {vr(tM)}")
    a(f"v_and_b32 {vr(tB)}, 4, {vr(tB)}")
    a(f"v_or_b32 {vr(tA)}, {vr(tA)}, {vr(tB)}")
    a(f"v_lshlrev_b32 {vr(tB)}, 1, {vr(tM)}")
    a(f"v_and_b32 {vr(tB)}, 8, {vr(tB)}")
    a(f"v_or_b32 {vr(tA)}, {vr(tA)}, {vr(tB)}")
    a(f"v_lshrrev_b32 {vr(tB)}, 2, {vr(tM)}")
    a(f"v_and_b32 {vr(tB)}, 1, {vr(tB)}")
    a(f"v_xor_b32 {vr(tB)}, {vr(tB)}, {vr(tHi)}")
    a(f"v_lshrrev_b32 {vr(tC)}, 4, {vr(tM)}")
    a(f"v_lshl_or_b32 {vr(tC)}, {vr(tB)}, 1, {vr(tC)}")
    a(f"v_lshlrev_b32 {vr(tD)}, 4, {vr(tA)}")
    a(f"v_mov_b32 {vr(tE)}, 512")
    for f in range(2):
        a(f"v_cmp_eq_u32 vcc, {f}, {vr(tC)}")
        a(f"v_cndmask_b32 {vr(tF)}, {vr(tE)}, {vr(tD)}, vcc")
        addm(v.aDiag + f, DIAG, tF)
    a(f"v_and_b32 {vr(tD)}, 7, {vr(tA)}")
    a(f"v_lshrrev_b32 {vr(tD)}, 1, {vr(tD)}")
    a(f"v_lshl_add_u32 {vr(tD)}, {vr(tC)}, 2, {vr(tD)}")
    a(f"v_and_b32 {vr(tE)}, 1, {vr(tM)}")
    a(f"v_lshlrev_b32 {vr(tE)}, 4, {vr(tE)}")
    a(f"v_mov_b32 {vr(tF)}, 0x3F80")
    a(f"v_lshlrev_b32 {vr(tE)}, {vr(tE)}, {vr(tF)}")
    a(f"v_mov_b32 {vr(tF)}, 0")
    for f in range(2):
        for rho in range(4):
            a(f"v_cmp_eq_u32 vcc, {4*f+rho}, {vr(tD)}")
            a(f"v_cndmask_b32 {vr(v.D2 + 4*f + rho)}, {vr(tF)}, {vr(tE)}, vcc")

def blk_diagW():
    a(f"s_mul_i32 s{sT0}, s{sW}, 528")
    a(f"v_and_b32 {vr(tA)}, 7, {vr(tM)}")
    a(f"v_lshlrev_b32 {vr(tA)}, 1, {vr(tA)}")
    a(f"v_lshl_add_u32 {vr(tA)}, {vr(tM)}, 4, {vr(tA)}")
    a(f"v_add_u32 {vr(tA)}, s{sT0}, {vr(tA)}")
    addm(v.diagW, DIAG, tA)

def blk_bias():
    a(f"s_lshl_b32 s{sT0}, s{sW}, 7")
    a(f"v_lshlrev_b32 {vr(tA)}, 4, {vr(tHi)}")
    a(f"v_add_u32 {vr(tA)}, s{sT0}, {vr(tA)}")
    addm(v.biasA, BIAS, tA)
    a(f"v_lshrrev_b32 {vr(tA)}, 2, {vr(tM)}")
    a(f"v_lshl_add_u32 {vr(tBW)}, {vr(tA)}, 9, {vr(v.biasA)}")
    a(f"s_lshl_b32 s{sT0}, s{sW}, 6")
    a(f"v_lshlrev_b32 {vr(tA)}, 1, {vr(tLane)}")
    a(f"v_add_u32 {vr(tA)}, s{sT0}, {vr(tA)}")
    a(f"v_mov_b32 {vr(tB)}, 0x40000000")
    a(f"v_cmp_gt_u32 vcc, 32, {vr(tLane)}")
    a(f"v_cndmask_b32 {vr(v.outA)}, {vr(tB)}, {vr(tA)}, vcc")

B1R = v.WAC + 32
TQ = v.WAC + 40
IX = [v.WAC + 48, v.b2c, v.b2c + 1, v.m0, v.m1]
aW1 = [v.WAC + 60 + k for k in range(4)]
TFR = v.Y
AD = v.WAC
AC = v.BR
sgT2 = v.WAC + 52
def blk_ad():
    for ks in range(8):
        a(f"v_xor_b32 {vr(AD+8+ks)}, {2*ks}, {vr(sgT+1)}")
        a(f"v_lshl_add_u32 {vr(AD+8+ks)}, {vr(AD+8+ks)}, 4, {vr(sgT)}")
    for b in range(8):
        a(f"v_xor_b32 {vr(AD+b)}, {b}, {vr(sgT+2)}")
        a(f"v_lshl_add_u32 {vr(AD+b)}, {vr(AD+b)}, 4, {vr(sgT+3)}")
    for k in range(4): a(f"v_add_u32 {vr(aW1[k])}, 0x10000, {vr(aW+k)}")

def blk_stg():
    a(f"v_lshrrev_b32 {vr(tA)}, 2, {vr(tM)}")
    a(f"v_lshlrev_b32 {vr(tB)}, 8, {vr(tA)}")
    addm(sgT, BIAS, tB)
    a(f"v_xor_b32 {vr(sgT+1)}, {vr(tA)}, {vr(tHi)}")
    a(f"s_lshl_b32 s{sT0}, s{sW}, 2")
    a(f"v_lshrrev_b32 {vr(tA)}, 3, {vr(tM)}")
    a(f"v_add_u32 {vr(sgT+2)}, s{sT0}, {vr(tA)}")
    a(f"v_and_b32 {vr(tA)}, 7, {vr(tM)}")
    a(f"v_lshlrev_b32 {vr(tA)}, 1, {vr(tA)}")
    addm(sgT+3, BIAS, tA)
    a(f"s_lshl_b32 s{sT0}, s{sW}, 6")
    a(f"v_lshlrev_b32 {vr(tA)}, 3, {vr(tHi)}")
    a(f"v_add_u32 {vr(tA)}, s{sT0}, {vr(tA)}")
    addm(sgT2, BIAS + 2048, tA)
    a(f"v_xor_b32 {vr(tA)}, {vr(tQ)}, {vr(tN4)}")
    a(f"v_and_b32 {vr(tA)}, 1, {vr(tA)}")
    a(f"v_lshlrev_b32 {vr(tA)}, 9, {vr(tA)}")
    a(f"v_lshrrev_b32 {vr(tB)}, 1, {vr(tQ)}")
    a(f"v_lshl_add_u32 {vr(tA)}, {vr(tB)}, 3, {vr(tA)}")
    a(f"v_add_u32 {vr(tA)}, s{sT0}, {vr(tA)}")
    addm(sgT2+1, BIAS + 3072, tA)

def grab(fn):
    m = len(a.lines); fn(); return cut(m)
def weave(main, side, start=0):
    n = len(main); k = 0
    for i, x in enumerate(main):
        for y in x.split("\n"): a(y)
        want = (len(side) * (i + 1 - start)) // max(1, n - start) if i >= start else 0
        while k < want:
            a(side[k]); k += 1
    while k < len(side):
        a(side[k]); k += 1

LATE = {"aH": blk_aH, "aT": blk_aT, "part": blk_part, "bias": blk_bias, "diag": blk_diag, "diagW": blk_diagW}
late = [x for x in OPT("late", "aH,aT,part,bias").split(",") if x]
early = [x for x in LATE if x not in late]
ND0 = int(OPT("nd0", "8"))
_m = len(a.lines)
blk_fill(); blk_dma(); blk_cd(); blk_aW(); blk_stg(); blk_ad()
for x in LATE: LATE[x]()
interleave(WD_[:ND0], cut(_m))
a(f"s_mov_b32 s{sSel}, 0xFFFF0000")
a(f"s_mov_b32 s{sSel+1}, 0xFFFF0000")
ts("static")
a(f"s_waitcnt vmcnt({ND0 + NSTG})")
ts("maskw")
_m = len(a.lines)
tP = v.Y1 + 4
for b in range(2):
    for e in range(4):
        src = MK + 2*b + (e >> 1)
        lit = "0x7fff" if e % 2 == 0 else "0x7fff0000"
        bal = sBal + 2 * (4*b + e)
        a(f"v_and_b32 {vr(tA)}, {lit}, {vr(src)}")
        a(f"v_cmp_ne_u32 {sp(bal)}, 0, {vr(tA)}")
for b in range(2):
    for e in range(4):
        bal = sBal + 2 * (4*b + e)
        a(f"v_mbcnt_lo_u32_b32 {vr(tP + 4*b + e)}, s{bal}, 0")
        a(f"v_mbcnt_hi_u32_b32 {vr(tP + 4*b + e)}, s{bal+1}, {vr(tP + 4*b + e)}")
        a(f"s_bcnt1_i32_b64 s{sT0 + 4*b + e}, {sp(bal)}")
for b in range(2):
    t0 = sT0 + 4*b
    a(f"s_add_u32 s{sT0+10}, s{t0}, s{t0+1}")
    a(f"s_add_u32 s{sT0+11}, s{sT0+10}, s{t0+2}")
    a(f"s_add_u32 s{sT0+8+b}, s{sT0+11}, s{t0+3}")
    a(f"s_mov_b32 s{t0+1}, s{t0}")
    a(f"s_mov_b32 s{t0}, 0")
    a(f"s_mov_b32 s{t0+2}, s{sT0+10}")
    a(f"s_mov_b32 s{t0+3}, s{sT0+11}")
    a(f"s_add_u32 s{sT0+12+b}, s{sT0+8+b}, 31")
    a(f"s_lshr_b32 s{sT0+12+b}, s{sT0+12+b}, 5")
    a(f"s_max_u32 s{sT0+12+b}, s{sT0+12+b}, 1")
a(f"s_lshl_b32 s{sT0+14}, s{sW}, 3")
a(f"s_add_u32 s{sT0+14}, s{sT0+14}, {CNT}")
a(f"s_add_u32 s{sT0+14}, s{sT0+14}, s{sMB}")
a(f"v_mov_b32 {vr(tA)}, s{sT0+14}")
tF2 = tF
assert tF2 % 2 == 0
a(f"v_mov_b32 {vr(tF2)}, s{sT0+12}")
a(f"v_mov_b32 {vr(tF2+1)}, s{sT0+13}")
a(f"ds_write_b64 {vr(tA)}, {vr(tF2,2)}")
ND1 = int(OPT("nd1", "4"))
interleave(WD_[ND0:ND0+ND1], cut(_m))
a("s_waitcnt lgkmcnt(0)")
a("s_barrier")
ts("B1")
_m = len(a.lines)
tR = v.H + 8
a(f"s_add_u32 s{sT0+14}, s{sMB}, {CNT}")
a(f"v_mov_b32 {vr(tA)}, s{sT0+14}")
a(f"ds_read_b128 {vr(tR,4)}, {vr(tA)}")
a(f"ds_read_b128 {vr(tR+4,4)}, {vr(tA)} offset:16")
a(f"s_mov_b32 s{sDelta}, 2112")
a(f"v_lshlrev_b32 {vr(tB)}, 2, {vr(tLane)}")
a(f"s_mul_i32 s{sT0+16}, s{sW}, 400")
a(f"v_add_u32 {vr(tB)}, s{sT0+16}, {vr(tB)}")
a("s_waitcnt lgkmcnt(0)")
for j in range(8):
    a(f"v_readfirstlane_b32 s{sP+1+j}, {vr(tR+j)}")
a(f"s_mov_b32 s{sP}, 0")
for j in range(8):
    a(f"s_add_u32 s{sP+1+j}, s{sP+1+j}, s{sP+j}")
a(f"s_lshl_b32 m0, s{sW}, 1")
a(f"s_movrels_b32 s{sT0+14}, s{sP}")
a(f"s_movrels_b32 s{sT0+15}, s{sP+1}")
for b in range(2):
    a(f"s_lshl_b32 s{sT0+14+b}, s{sT0+14+b}, 6")
    a(f"s_add_u32 s{sT0+14+b}, s{sT0+14+b}, s{sMB}")
    for e in range(4):
        bal = sBal + 2 * (4*b + e)
        a(f"s_lshl_b32 s{sT0+16}, s{sT0+4*b+e}, 1")
        a(f"s_add_u32 s{sT0+16}, s{sT0+16}, s{sT0+14+b}")
        a(f"v_lshl_add_u32 {vr(tC if e % 2 == 0 else tE)}, {vr(tP+4*b+e)}, 1, s{sT0+16}")
        a(f"v_add_u32 {vr(tD if e % 2 == 0 else tG)}, {200*b + e}, {vr(tB)}")
        a(f"s_mov_b64 exec, {sp(bal)}")
        a(f"ds_write_b16 {vr(tC if e % 2 == 0 else tE)}, {vr(tD if e % 2 == 0 else tG)} offset:{IDX}")
        op = "ds_write_b16" if e % 2 == 0 else "ds_write_b16_d16_hi"
        a(f"{op} {vr(tC if e % 2 == 0 else tE)}, {vr(MK + 2*b + (e>>1))} offset:{MASKL + 64}")
        a(f"s_mov_b64 exec, -1")
a(f"s_mov_b32 s{sNT}, s{sP+8}")
a(f"s_mov_b64 {sp(sFIRST)}, 0")
a(f"s_mov_b64 {sp(sLAST)}, 0")
for j in range(8):
    if j > 0:
        a(f"s_lshl_b64 {sp(sT0+16)}, 1, s{sP+j}")
        a(f"s_or_b64 {sp(sFIRST)}, {sp(sFIRST)}, {sp(sT0+16)}")
    a(f"s_add_u32 s{sT0+18}, s{sP+j+1}, 1")
    a(f"s_lshl_b64 {sp(sT0+16)}, 1, s{sT0+18}")
    a(f"s_or_b64 {sp(sLAST)}, {sp(sLAST)}, {sp(sT0+16)}")
a(f"s_sub_u32 s{sT0+18}, s{sNT}, 1")
a(f"s_lshl_b64 {sp(sEND)}, 1, s{sT0+18}")
if FL("nofirst"): a(f"s_mov_b64 {sp(sFIRST)}, 0")
if FL("nolast"): a(f"s_mov_b64 {sp(sLAST)}, 0")
interleave(WD_[ND0+ND1:], cut(_m))
ts("lists")
a(f"s_waitcnt vmcnt({OPT('b2vm', '8')}) lgkmcnt(0)")
a("s_barrier")
ts("B2a")
def tr_list(dst, slot0, base, tiles=range(4)):
    return [f"ds_read_b64_tr_b16 {vr(dst + 8*T + 4*f + 2*u, 2)}, {vr(base[2*f + u])} offset:{(slot0+T)*8192}"
            for T in tiles for f in range(2) for u in range(2)]
aW0 = [aW + k for k in range(4)]
def qshift():
    return [f"v_alignbit_b32 {vr(v.Q+k)}, {vr(v.Q+k+1)}, {vr(v.Q+k)}, 16" for k in range(3)] + \
           [f"v_lshrrev_b32 {vr(v.Q+3)}, 16, {vr(v.Q+3)}"]
Fr = lambda f: vr(v.D2 + 4*f, 4)
def wac(T):
    D = vr(v.WAC + 16*T, 16)
    return [f"{MF32} {D}, {Fr(0)}, {vr(v.WE + 8*T, 4)}, 0", f"{MF32} {D}, {Fr(1)}, {vr(v.WE + 8*T + 4, 4)}, {D}",
            f"{MF32} {D}, {Fr(0)}, {vr(v.H + 8*T, 4)}, {D}", f"{MF32} {D}, {Fr(1)}, {vr(v.H + 8*T + 4, 4)}, {D}"]
def scale(r, n):
    return [f"v_mul_f32 {vr(r+i)}, s{sC}, {vr(r+i)}\nv_mul_f32 {vr(r+i+1)}, s{sC}, {vr(r+i+1)}" for i in range(0, n, 2)]
Dc = [f"{MF32} {vr(AC,16)}, {vr(v.H + 4*ks, 4)}, {vr(TFR + 4*ks, 4)}, {'0' if ks == 0 else vr(AC,16)}" for ks in range(8)]
Db = [f"{MF32} {vr(AC,16)}, {vr(v.H + 4*ks, 4)}, {vr(TFR + 4*ks, 4)}, {vr(AC,16)}" for ks in range(8)]
def mix(mf, other):
    out = []; n = len(mf); k = 0
    for i, x in enumerate(mf):
        out.append(x)
        want = (len(other) * (i + 1)) // n
        out += other[k:want]; k = want
    return out
a.begin_auto()
Wc = lambda T: tr_list(v.H, 0, aW1, [T])
Wa = lambda T: tr_list(v.WE, 0, aW0, [T])
emit([f"ds_read_b128 {vr(TFR+4*ks,4)}, {vr(AD+8+ks)}" for ks in range(8)])
emit(Wc(0) + Wa(0))
emit([f"ds_read_u16_d16_hi {vr(TQ+b)}, {vr(AD+b)} offset:{256*b}" for b in range(8)])
emit(Wc(1) + Wa(1))
tq = [f"v_mul_f32 {vr(TQ+b)}, s{sC}, {vr(TQ+b)}" for b in range(8)]
tq += [f"v_cvt_pk_bf16_f32 {vr(v.Q+k)}, {vr(TQ+2*k)}, {vr(TQ+2*k+1)}" for k in range(4)]
tq += [f"ds_write_b16 {vr(v.diagW)}, {vr(v.Q)}"] + qshift() + [f"v_add_u32 {vr(v.diagW)}, 2112, {vr(v.diagW)}"]
small = [f"ds_read_u16 {vr(IX[t])}, {vr(v.idxA)} offset:{64*t}" for t in range(5)]
small += [f"ds_read_u16 {vr(v.idx)}, {vr(v.idxA)} offset:{64*5}"]
small2 = [f"ds_read_b64 {vr(B1R+2*i,2)}, {vr(sgT2)} offset:{16*i}" for i in range(4)]
small2 += [f"ds_read_b64 {vr(v.A3+4*g+2*hh,2)}, {vr(sgT2+1)} offset:{32*g+16*hh}" for g in range(2) for hh in range(2)]
w0, w1, w2, w3 = wac(0), wac(1), wac(2), wac(3)
emit(mix([Dc[0], Dc[1]] + w0, Wc(2) + Wa(2) + small + tq[:6]))
emit(mix([Dc[2], Dc[3]] + w1, Wc(3) + Wa(3) + small2 + tq[6:]))
for t in range(5):
    a(f"v_lshl_add_u32 {vr(IX[t])}, {vr(IX[t])}, 8, {vr(v.lane_off)}")
a.end_auto()
ts("preB3a")
a("s_waitcnt vmcnt(0) lgkmcnt(0)")
a("s_barrier")
ts("B3a")
def prep_parts():
    H = v.H; X = v.X; Y = v.Y
    D0 = vr(Y, 16); D1 = vr(H + 16, 16)
    p = {}
    p["qw"] = [f"ds_write_b16 {vr(v.diagW)}, {vr(v.Q)}"] + qshift() + [f"v_add_u32 {vr(v.biasA)}, 0x200, {vr(v.biasA)}"]
    p["rb"] = [f"ds_read_b128 {vr(v.BR + 4*i, 4)}, {vr(v.biasA)} offset:{32*i}" for i in range(4)]
    p["ptr"] = [f"v_add_u32 {vr(v.aDiag+f)}, s{sDelta}, {vr(v.aDiag+f)}" for f in range(2)] + \
               [f"s_sub_u32 s{sDelta}, 0, s{sDelta}", f"v_add_u32 {vr(v.diagW)}, s{sDelta}, {vr(v.diagW)}"]
    return p

dm = []
for t in range(4):
    dm += ["\n".join(dma_a(IX[t], sHist, "0", t, NT_HIST)), "\n".join(dma_b(IX[t], sHist, "0", t, NT_HIST))]
DPOS = [int(x) for x in OPT("dpos", "0,1,6,9,12,15,18,21").split(",")]
_mf = [0]
def emit_m(lst):
    for x in lst:
        emit([x])
        if x.startswith("v_mfma"):
            for j in range(8):
                if DPOS[j] == _mf[0]: emit([dm[j]])
            _mf[0] += 1
assert max(DPOS[:2]) < 2 and max(DPOS) < 26
a.begin_auto()
Wd = tr_list(v.WD, 4, aW0)
Wb = lambda T: tr_list(v.H, 4, aW0, [T])
B1F = v.WAC + 48
b1u = []
for i in range(4):
    b1u += [f"v_lshlrev_b32 {vr(B1F+4*i)}, 16, {vr(B1R+2*i)}", f"v_and_b32 {vr(B1F+4*i+1)}, 0xffff0000, {vr(B1R+2*i)}",
            f"v_lshlrev_b32 {vr(B1F+4*i+2)}, 16, {vr(B1R+2*i+1)}", f"v_and_b32 {vr(B1F+4*i+3)}, 0xffff0000, {vr(B1R+2*i+1)}"]
bsub = [f"v_sub_f32 {vr(AC+i)}, {vr(B1F+i)}, {vr(AC+i)}" for i in range(16)]
up = [f"v_add_u32 {vr(aW+k)}, 0x10000, {vr(aW+k)}" for k in range(4)]
dn = [f"v_subrev_u32 {vr(aW+k)}, 0x10000, {vr(aW+k)}" for k in range(4)]
s0, s1, s2, s3 = [scale(v.WAC + 16*T, 16) for T in range(4)]
X = v.X; Y = v.Y; H = v.H
emit_m([Dc[4]] + Wb(0) + [Dc[5]] + Wb(1) + up + [Dc[6]] + Wd[0:4] + b1u[0:8] + [Dc[7]] + Wd[4:8] + b1u[8:16])
emit_m(mix(w2, Wd[8:16] + dn + bsub))
emit_m([w3[0]] + Wb(2) + s0[0:3] + [w3[1]] + s0[3:6] + [w3[2]] + s0[6:8] + s1[0:2] + [w3[3]] + Wb(3) + s1[2:4])
emit([f"ds_read_b128 {vr(v.WE + 8*T + 4*f, 4)}, {vr(v.aDiag+f)} offset:{528*T}" for T in range(4) for f in range(2)])
ts("wac")
w2c = []
if FL("f16"):
    for i in range(8):
        w2c += [f"v_lshlrev_b32 {vr(v.tmp2)}, 16, {vr(v.A3+i)}", f"v_and_b32 {vr(v.A3+i)}, 0xffff0000, {vr(v.A3+i)}",
                f"v_cvt_pk_f16_f32 {vr(v.A3+i)}, {vr(v.tmp2)}, {vr(v.A3+i)}"]
emit_m(mix(Db, s1[4:8] + s2 + s3 + w2c))
WCTR = MISC0 + PART + 520
if not FL("b4"):
    a(f"v_mov_b32 {vr(v.D3)}, {WCTR}")
    a("s_mov_b64 exec, 1")
    a(f"ds_inc_u32 {vr(v.D3)}, {vr(v.D3)}")
    a("s_mov_b64 exec, -1")
ts("chain2")
PD = [Y, X, H, H + 16]
def P(T):
    D = vr(PD[T], 16)
    return [f"{MF32} {D}, {vr(v.WE+8*T,4)}, {vr(v.WD+8*T,4)}, {vr(v.WAC+16*T,16)}",
            f"{MF32} {D}, {vr(v.WE+8*T+4,4)}, {vr(v.WD+8*T+4,4)}, {D}"]
def cv(T):
    return [f"v_cvt_pk_bf16_f32 {vr(v.WE + 8*T + i)}, {vr(PD[T]+2*i)}, {vr(PD[T]+2*i+1)}" for i in range(8)]
p = prep_parts()
a(f"s_lshl_b32 s{sB2v}, s{sB2v}, 16")
a(f"s_cmp_eq_u32 s{sW}, 0")
a(f"s_cselect_b32 s{sB2v}, s{sB2v}, 0")
sc = scale(AC, 16)
bw = [f"ds_write_b128 {vr(tBW)}, {vr(AC+4*i,4)} offset:{32*i}" for i in range(4)]
zD = [f"v_mov_b32 {vr(v.D2+i)}, 0" for i in range(8)] + [f"v_mov_b32 {vr(v.D3+i)}, 0" for i in range(4)]
emit_m([P(0)[0]] + p["qw"][:-1] + [P(0)[1]] + p["ptr"] + zD[:4] + [P(1)[0]] + zD[4:] + [P(1)[1]])
emit_m(sc[:2] + bw[:1] + [P(2)[0]] + sc[2:4] + bw[1:2] + [P(2)[1]] + sc[4:6] + bw[2:3] + [P(3)[0]] + sc[6:8] + bw[3:4] + [P(3)[1]])
emit(cv(0))
a("s_waitcnt lgkmcnt(0)")
emit(p["rb"]); emit(p["qw"][-1:])
emit(cv(1))
a(f"v_mov_b32 {vr(v.b2c)}, s{sB2v}")
a(f"v_mov_b32 {vr(v.b2c+1)}, s{sB2v}")
for i in range(8): a(f"v_mov_b32 {vr(v.Y+i)}, 0")
emit(cv(2) + cv(3))
a.end_auto()
ts("prep0")
a(f"v_mov_b32 {vr(v.m0)}, 0")
a("s_waitcnt vmcnt(6) lgkmcnt(0)")
if FL("b4"):
    a("s_barrier")
else:
    a("s_mov_b64 exec, 1")
    a(f"ds_inc_u32 {vr(v.partR)}, {vr(v.partR)} offset:{CTR}")
    a("s_mov_b64 exec, -1")
    a(f"v_mov_b32 {vr(v.idx+0 if False else v.tmp)}, {WCTR}")
    a.label("LS_b4")
    a(f"ds_read_b32 {vr(v.D3)}, {vr(v.partR)} offset:{CTR}")
    a(f"ds_read_b32 {vr(v.D3+1)}, {vr(v.tmp)}")
    a("s_waitcnt lgkmcnt(0)")
    a(f"v_readfirstlane_b32 s{sT0}, {vr(v.D3)}")
    a(f"v_readfirstlane_b32 s{sT0+1}, {vr(v.D3+1)}")
    a(f"s_lshr_b32 s{sT0+1}, s{sT0+1}, 1")
    a(f"s_min_u32 s{sT0}, s{sT0}, s{sT0+1}")
    a(f"s_cmp_ge_u32 s{sT0}, 4")
    a("s_cbranch_scc0 LS_b4")
    a(f"v_mov_b32 {vr(v.D3)}, 0")
    a(f"v_mov_b32 {vr(v.D3+1)}, 0")
ts("B4")
dma(v.m1, sHist, "0", 4, NT_HIST)
a(f"v_mov_b32 {vr(v.m1)}, 0")
if PROF:
    for r in (97, 98, 99): a(f"s_mov_b32 s{r}, 0")
if FL("ilog"):
    a("s_memtime s[80:81]"); a("s_waitcnt lgkmcnt(0)"); a("s_mov_b32 s82, s80"); a("s_mov_b32 s84, 0")
    a(f"s_mov_b32 s86, s{sFIRST}"); a(f"s_mov_b32 s87, s{sLAST}")
    for r in range(56, 68): a(f"s_mov_b32 s{r}, 0")
a(f"s_mov_b32 s{sTgtR}, {0 if FL('b4') else 4}")
sOne = 68
a(f"s_mov_b32 s{sOne}, 1.0")
a(f"s_mov_b32 s{sOne+1}, 1.0")

F16 = FL("f16")
def sig_parts():
    Y = v.Y
    e = [f"v_exp_f32 {vr(Y+i)}, {vr(Y+i)}" for i in range(16)]
    if F16:
        c = [f"v_cvt_pk_f16_f32 {vr(Y+k)}, {vr(Y+2*k)}, {vr(Y+2*k+1)}" for k in range(8)]
        d = [f"v_pk_add_f16 {vr(Y+k)}, {vr(Y+k)}, 1.0 op_sel_hi:[1,0]" for k in range(8)]
        r = [f"v_rcp_f16_sdwa {vr(Y+k)}, {vr(Y+k)} dst_sel:WORD_{h} dst_unused:UNUSED_PRESERVE src0_sel:WORD_{h}" for h in range(2) for k in range(8)]
        return e, d, r, c
    d = [f"v_add_f32 {vr(Y+i)}, 1.0, {vr(Y+i)}" for i in range(16)]
    r = [f"v_rcp_f32 {vr(Y+i)}, {vr(Y+i)}" for i in range(16)]
    c = [f"v_cvt_pk_bf16_f32 {vr(Y+k)}, {vr(Y+2*k)}, {vr(Y+2*k+1)}" for k in range(8)]
    return e, d, r, c
def sig_stream():
    e, d, r, c = sig_parts()
    if F16: return e + c + d + r
    return e + d + r[:8] + c[:4] + r[8:] + c[4:]

def score_mfma():
    Y = v.Y
    MS = "v_mfma_f32_16x16x32_f16" if F16 else MF16
    S1 = f"{MS} {vr(v.D3,4)}, {vr(v.A3,4)}, {vr(Y,4)}, {vr(v.b2c,4)}"
    S2 = f"{MS} {vr(v.D3,4)}, {vr(v.A3+4,4)}, {vr(Y+4,4)}, {vr(v.D3,4)}"
    if FL("noS"): S1 = S2 = "; skip"
    return [S1, S2]

def fin(par_off, addr=None):
    return [f"v_mul_f32 {vr(v.D3)}, {vr(v.D3)}, {vr(v.m0)}",
            f"v_mul_f32 {vr(v.D3+1)}, {vr(v.D3+1)}, {vr(v.m1)}",
            f"v_cvt_pk_bf16_f32 {vr(v.D3)}, {vr(v.D3)}, {vr(v.D3+1)}",
            f"ds_write_b32 {vr(v.partW if addr is None else addr)}, {vr(v.D3)} offset:{par_off}"]

def epilogue():
    D2 = v.D2; T = v.H
    for dt in range(2):
        a(f"v_add_f32 {vr(T+2*dt)}, {vr(D2+4*dt)}, {vr(D2+4*dt+1)}")
        a(f"v_add_f32 {vr(T+2*dt+1)}, {vr(D2+4*dt+2)}, {vr(D2+4*dt+3)}")
    for dt in range(2):
        a(f"v_add_f32 {vr(T+2*dt)}, {vr(T+2*dt)}, {vr(T+2*dt+1)}")
    for i in range(8):
        a(f"v_mov_b32 {vr(D2+i)}, 0")
    a(f"v_cndmask_b32 {vr(T)}, {vr(T)}, {vr(T+2)}, {sp(sSel)}")
    a(f"v_cvt_pk_bf16_f32 {vr(T)}, {vr(T)}, {vr(T)}")
    a(f"buffer_store_short {vr(T)}, {vr(v.outA)}, {srd(sOut)}, 0 offen")
    a(f"s_add_u32 s{sOut}, s{sOut}, 256")
    a(f"s_addc_u32 s{sOut+1}, s{sOut+1}, 0")

def pieces(u, grp):
    H = v.H; X = v.X; Y = v.Y
    c = {}
    c["Rh"] = [f"ds_read_b128 {vr(H+4*ks,4)}, {vr(v.aH + (ks&3))} offset:{u*8192 + 4096*(ks>>2)}" for ks in range(8)]
    c["Ri"] = f"ds_read_u16 {vr(v.idx)}, {vr(v.idxA)} offset:{64*(u+6)}"
    mo = 64 * (u + 1)
    c["Rm"] = [f"ds_read_u16_d16_hi {vr(v.m0)}, {vr(v.maskA)} offset:{mo}",
               f"ds_read_u16_d16_hi {vr(v.m1)}, {vr(v.maskA)} offset:{mo+32}"]
    c["fin"] = fin(((u - 1) & 1) * 256)
    c["G"] = [f"{MF32} {vr(Y,16)}, {vr(v.WE+4*ks,4)}, {vr(H+4*ks,4)}, {vr(v.BR,16) if ks == 0 else vr(Y,16)}" for ks in range(8)]
    c["ix"] = f"v_lshl_add_u32 {vr(v.tmp)}, {vr(v.idx)}, 8, {vr(v.lane_off)}"
    c["da"] = dma_a(v.tmp, sHist, "0", (u+5) & 7, NT_HIST)
    c["db"] = dma_b(v.tmp, sHist, "0", (u+5) & 7, NT_HIST)
    slot = (u - 2) & 7
    c["Rt"] = [f"ds_read_b64_tr_b16 {vr(X + 4*dt + 2*du, 2)}, {vr(v.aT + 2*du + dt)} offset:{slot*8192}" for du in range(2) for dt in range(2)]
    c["Rp"] = f"ds_read_b128 {vr(X+8,4)}, {vr(v.partR)} offset:{(u&1)*256}"
    c["G2"] = [f"{MF16} {vr(v.D2+4*dt,4)}, {vr(X+8,4)}, {vr(X+4*dt,4)}, {vr(v.D2+4*dt,4)}" for dt in range(2)]
    c["S"] = score_mfma()
    GAP = int(OPT("gap", "-1"))
    if GAP >= 0:
        c["G"] = [x + f"\ns_nop {GAP}" for x in c["G"]]
    N = "; skip"
    if FL("nog2"): c["Rt"] = [N]*4; c["Rp"] = N; c["G2"] = [N]*2
    if FL("nofin"): c["fin"] = [N]*4
    if FL("noH"): c["Rh"] = [N]*8
    return c

PRIO = not FL("noprio")
def prio(n): return [f"s_setprio {n}"] if PRIO else []
def arrive():
    return ["s_mov_b64 exec, 1", f"ds_inc_u32 {vr(v.partR)}, {vr(v.partR)} offset:{CTR}", "s_mov_b64 exec, -1"]
def poll_rd(): return [f"ds_read_b32 {vr(v.tmp)}, {vr(v.partR)} offset:{CTR}"]
def poll_chk(target):
    return ["s_waitcnt lgkmcnt(0)", f"v_readfirstlane_b32 s{sCv}, {vr(v.tmp)}", f"s_cmp_ge_u32 s{sCv}, s{sTgtC}",
            f"s_cbranch_scc0 {target}"]
def spin(label, back):
    a.label(label)
    emit(poll_rd() + ["s_waitcnt lgkmcnt(0)", f"v_readfirstlane_b32 s{sCv}, {vr(v.tmp)}", f"s_cmp_ge_u32 s{sCv}, s{sTgtC}",
         f"s_cbranch_scc0 {label}"])
    if back: a(f"s_branch {back}")
HPRE = FL("hpre")
def with_sync(st, u, first, pr):
    st = list(st)
    RAISE = int(OPT("raise", "24"))
    if not HPRE:
        RD = len(st) - int(OPT("rdback", "10")); CHK = len(st); Rh = []
    else:
        Rh = pieces((u + 1) & 7, 0)["Rh"]
        RD = int(OPT("rdpos", "16")); CHK = int(OPT("chk", "32"))
        if first: RD, CHK = len(st) - 30, len(st) - 8
    pre, post = st[:CHK], st[CHK:]
    pre = pre[:RD] + poll_rd() + pre[RD:]
    if RAISE >= 0: pre = pre[:RAISE] + prio(pr[2]) + pre[RAISE:]
    if first:
        post = post + Rh
    else:
        out = []; q = list(Rh)
        for x in post:
            out.append(x)
            if q and x.startswith("v_rcp"): out.append(q.pop(0))
        post = out + q
    return pre, post

NH = int(OPT("nh", "2"))
TRIM = not FL("notrim")
def m_rest(u):
    c = pieces(u, 0)
    return c["G"][6], c["G"][7], c["G2"][0], c["G2"][1]
def m_phase(u):
    c = pieces(u, 0); G, Rh, Rt, S, Z = c["G"], c["Rh"], c["Rt"], c["S"], c["G2"]
    da, db, fin_ = c["da"], c["db"], c["fin"]
    tg = [f"s_add_u32 s{sTgtR}, s{sTgtR}, 4", f"s_bitcmp1_b32 s{sEND}, {u}", f"s_cselect_b32 s{sTgtC}, -1, s{sTgtR}"]
    s = Rh[:4] + [S[0]] + Rh[4:6] + [S[1]] + Rh[6:]
    ORD = OPT("mord", "a")
    if ORD == "e":
        s = Rh[:NH] + [S[0]] + Rh[NH:NH+2] + [S[1], G[0]] + Rh[NH+2:] + [c["ix"], da[0], c["Rp"], da[1], G[1]] + fin_
        s += [G[2], db[0], Rt[0], db[1], Rt[2], G[3], Rt[1], Rt[3], c["Ri"], G[4]] + c["Rm"] + tg + [G[5]]
        if not TRIM: s += [G[6], G[7], Z[0], Z[1]]
    if ORD == "a":
        s += [c["ix"], da[0], c["Rp"], da[1], G[0]] + fin_ + [G[1], db[0], Rt[0], db[1], Rt[2], G[2], Rt[1], Rt[3], c["Ri"], G[3]]
        s += c["Rm"] + tg + [G[4], G[5]]
        if not TRIM: s += [G[6], G[7], Z[0], Z[1]]
    return s

def v_prep(vp):
    H = v.H; X = v.X; Y = v.Y; BR = v.BR
    D0 = vr(H, 16); D1 = vr(H + 16, 16)
    e, d, r, c = sig_parts()
    fr = lambda T, f: (X if T < 2 else BR) + 8 * (T & 1) + 4 * f
    rd = [f"ds_read_b128 {vr(fr(T, f), 4)}, {vr(v.aDiag+f)} offset:{528*T}" for T in range(4) for f in range(2)]
    def P(T):
        D = D0 if T % 2 == 0 else D1
        m = [f"{MF32} {D}, {vr(fr(T,0),4)}, {vr(v.WD+8*T,4)}, {vr(v.WAC+16*T,16)}",
             f"{MF32} {D}, {vr(fr(T,1),4)}, {vr(v.WD+8*T+4,4)}, {D}"]
        if FL("pprio"): m = [f"s_setprio 3\n{x}\ns_setprio {vp}" for x in m]
        return m
    def cv(T):
        D = H if T % 2 == 0 else H + 16
        return [f"v_cvt_pk_bf16_f32 {vr(v.WE + 8*T + i)}, {vr(D+2*i)}, {vr(D+2*i+1)}" for i in range(8)]
    p = prep_parts()
    P0, P1, P2, P3 = P(0), P(1), P(2), P(3)
    s = e[0:8] + ["s_waitcnt lgkmcnt(4)"]
    if F16:
        s += [P0[0]] + e[8:11] + [P0[1]] + e[11:14] + [P1[0]] + e[14:16] + c[0:2] + [P1[1]] + c[2:8] + d
        s += cv(0) + cv(1) + r[:3]
        s += ["s_waitcnt lgkmcnt(0)", P2[0]] + r[3:6] + [P2[1]] + r[6:9] + [P3[0]] + r[9:12] + [P3[1]]
        s += p["rb"] + r[12:] + p["qw"][1:] + p["ptr"] + cv(2) + cv(3)
        return s
    s += [P0[0]] + e[8:11] + [P0[1]] + e[11:14] + [P1[0]] + e[14:16] + d[0:2] + [P1[1]] + d[2:16]
    s += cv(0) + cv(1) + r[:8] + c[:4]
    s += ["s_waitcnt lgkmcnt(0)", P2[0]] + r[8:11] + [P2[1]] + r[11:14] + [P3[0]] + r[14:16] + [P3[1]]
    s += p["rb"] + c[4:] + p["qw"][1:] + p["ptr"] + cv(2) + cv(3)
    return s

def diag_reads():
    X = v.X; BR = v.BR
    fr = lambda T, f: (X if T < 2 else BR) + 8 * (T & 1) + 4 * f
    rd = [f"ds_read_b128 {vr(fr(T, f), 4)}, {vr(v.aDiag+f)} offset:{528*T}" for T in range(4) for f in range(2)]
    return rd[:4], rd[4:], f"ds_write_b16 {vr(v.diagW)}, {vr(v.Q)}"

INLOOP = True
def ilog(u):
    if PROF:
        emit(pm(3)); a("s_waitcnt lgkmcnt(0)"); emit(pacc())
    if FL("ilog"):
        a("s_memtime s[80:81]"); a("s_waitcnt lgkmcnt(0)")
        a("s_sub_u32 s83, s80, s82"); a("s_mov_b32 s82, s80")
        a("s_min_u32 m0, s84, 11")
        if u % 2 == 0:
            a("s_movreld_b32 s56, s83")
        else:
            a("s_movrels_b32 s85, s56"); a("s_lshl_b32 s83, s83, 16"); a("s_or_b32 s85, s85, s83")
            a("s_movreld_b32 s56, s85"); a("s_add_u32 s84, s84, 1")

def vsync(st, pr):
    st = list(st)
    RAISE = int(OPT("raise", "24"))
    k = len(st) - int(OPT("rdback", "10"))
    st = st[:k] + poll_rd() + st[k:]
    if RFL:
        st = st[:-RFL] + ["s_waitcnt lgkmcnt(0)", f"v_readfirstlane_b32 s{sCv}, {vr(v.tmp)}"] + st[-RFL:]
    if RAISE >= 0: st = st[:RAISE] + prio(pr[2]) + st[RAISE:]
    return st

RFL = int(OPT("rfl", "0"))
EARLY = int(OPT("early", "0"))
def house(u):
    if u == 7:
        a(f"v_add_u32 {vr(v.idxA)}, 512, {vr(v.idxA)}")
        a(f"v_add_u32 {vr(v.maskA)}, 512, {vr(v.maskA)}")
        a(f"s_lshr_b64 {sp(sFIRST)}, {sp(sFIRST)}, 8")
        a(f"s_lshr_b64 {sp(sLAST)}, {sp(sLAST)}, 8")
        a(f"s_lshr_b64 {sp(sEND)}, {sp(sEND)}, 8")
def loop(L, pr):
    VMW = "s_waitcnt lgkmcnt(0)" if FL("novm") else "s_waitcnt vmcnt(8)"
    emit(prio(pr[0]))
    rest_v = {}
    for u in range(8):
        mp = m_phase(u)
        if EARLY:
            if u == 0: emit(mp[:NH])
            a.label(f"{L}x{u}")
            a.begin_auto()
            emit(mp[NH:])
            a.end_auto(init=[{("v", v.H + 4*j + k) for k in range(4)} for j in range(NH)])
        else:
            a.label(f"{L}b{u}")
            emit(pm(0))
            a.begin_auto()
            emit(mp)
            a.end_auto()
        a(f"s_bitcmp1_b32 s{sFIRST}, {u+1}")
        a(f"s_cbranch_scc1 {L}first{u}")
        if TRIM:
            G6, G7, Z0, Z1 = m_rest(u)
            emit([G6, f"s_bitcmp1_b32 s{sLAST}, {u}", VMW + (" lgkmcnt(0)" if "vmcnt" in VMW else "")] + arrive() + [G7, Z0, Z1])
        else:
            a(f"s_bitcmp1_b32 s{sLAST}, {u}")
            a(VMW)
            emit(arrive())
        a(f"s_cbranch_scc1 {L}epi{u}")
        a.label(f"{L}done{u}")
        emit(pm(1))
        emit(prio(pr[1]))
        if EARLY:
            st = list(sig_stream())
            RAISE = int(OPT("raise", "24"))
            head, tail = st[:-EARLY], st[-EARLY:]
            k = len(head) - int(OPT("rdback", "10"))
            head = head[:k] + poll_rd() + head[k:]
            if RAISE >= 0: head = head[:RAISE] + prio(pr[2]) + head[RAISE:]
            emit(head)
            a("s_waitcnt lgkmcnt(0)")
            a(f"v_readfirstlane_b32 s{sCv}, {vr(v.tmp)}")
            emit(tail[:2])
            a(f"s_cmp_ge_u32 s{sCv}, s{sTgtC}")
            a(f"s_cbranch_scc0 {L}slow{u}")
            a.label(f"{L}back{u}")
            rh = pieces((u + 1) & 7, 0)["Rh"][:NH]
            t2 = tail[2:]
            rest_v[u] = t2
            HP = int(OPT("hpos", "0"))
            emit(t2[:HP])
            for j, x in enumerate(t2[HP:]):
                if j < NH: emit([rh[j]])
                emit([x])
            house(u)
            emit(prio(pr[0]) or ["s_nop 0"])
            if u == 7: a(f"s_branch {L}x0")
        else:
            emit(vsync(sig_stream(), pr))
            a.label(f"{L}vj{u}")
            emit(pm(2))
            house(u)
            if RFL == 0:
                a("s_waitcnt lgkmcnt(0)")
                a(f"v_readfirstlane_b32 s{sCv}, {vr(v.tmp)}")
            emit(prio(pr[0]) or ["s_nop 0"])
            a(f"s_cmp_ge_u32 s{sCv}, s{sTgtC}")
            a(f"s_cbranch_scc0 {L}slow{u}")
            ilog(u)
            if u == 7: a(f"s_branch {L}b0")
    for u in range(8):
        a.label(f"{L}first{u}")
        r01, r23, qw = diag_reads()
        if TRIM:
            G6, G7, Z0, Z1 = m_rest(u)
            emit([G6, G7, "s_waitcnt lgkmcnt(0)", Z0, Z1])
        emit(r01 + [qw])
        a(f"s_bitcmp1_b32 s{sLAST}, {u}")
        a(VMW)
        emit(arrive())
        emit(r23)
        a(f"s_cbranch_scc1 {L}fepi{u}")
        a.label(f"{L}fdone{u}")
        emit(prio(pr[1]))
        a.begin_auto()
        emit(vsync(v_prep(pr[1]), pr))
        a.end_auto()
        if EARLY:
            house(u)
            if RFL == 0:
                a("s_waitcnt lgkmcnt(0)")
                a(f"v_readfirstlane_b32 s{sCv}, {vr(v.tmp)}")
            emit(prio(pr[0]) or ["s_nop 0"])
            a(f"s_cmp_ge_u32 s{sCv}, s{sTgtC}")
            a(f"s_cbranch_scc0 {L}fslow{u}")
            a.label(f"{L}fback{u}")
            emit(pieces((u + 1) & 7, 0)["Rh"][:NH])
            a(f"s_branch {L}x{(u+1)&7}")
        else:
            a(f"s_branch {L}vj{u}")
    for u in range(8):
        a.label(f"{L}epi{u}")
        epilogue()
        a(f"s_branch {L}done{u}")
        a.label(f"{L}fepi{u}")
        epilogue()
        a(f"s_branch {L}fdone{u}")
    spinloop = lambda lab: poll_rd() + ["s_waitcnt lgkmcnt(0)", f"v_readfirstlane_b32 s{sCv}, {vr(v.tmp)}",
                                        f"s_cmp_ge_u32 s{sCv}, s{sTgtC}", f"s_cbranch_scc0 {lab}"]
    for u in range(8):
        a.label(f"{L}slow{u}")
        a(f"s_cmp_eq_u32 s{sTgtC}, -1")
        a(f"s_cbranch_scc1 {L}{'vend' if EARLY else 'stub'}{u}")
        a.label(f"{L}spin{u}")
        emit(spinloop(f"{L}spin{u}"))
        a(f"s_branch {L}{'back' + str(u) if EARLY else 'b' + str((u+1)&7)}")
        if EARLY:
            a.label(f"{L}fslow{u}")
            a(f"s_cmp_eq_u32 s{sTgtC}, -1")
            a(f"s_cbranch_scc1 {L}stub{u}")
            a.label(f"{L}fspin{u}")
            emit(spinloop(f"{L}fspin{u}"))
            a(f"s_branch {L}fback{u}")
    for u in range(8):
        if EARLY:
            a.label(f"{L}vend{u}")
            emit(rest_v[u])
            house(u)
        a.label(f"{L}stub{u}")
        a(f"s_mov_b32 s{sSb}, {((u-1)&7)*8192}")
        a(f"s_mov_b32 s{sSc}, {u*8192}")
        a(f"s_mov_b32 s{sPb}, {((u+1)&1)*256}")
        a(f"s_mov_b32 s{sPc}, {(u&1)*256}")
        a(f"s_lshr_b64 {sp(sLAST)}, {sp(sLAST)}, {u+1 if u < 7 else 0}") if u < 7 else None
        a(f"s_branch L_tail")
sSb, sSc, sMo, sPb, sPc = [sT0 + i for i in range(5)]
PA = [int(x) for x in OPT("pa", "302")]
PB = [int(x) for x in OPT("pb", "302")]
TWO = PA != PB
if TWO:
    a(f"s_cmp_eq_u32 s{sFav}, {OPT('fav', '1')}")
    a("s_cbranch_scc1 LA_entry")
    loop("LB_", PB)
    a.label("LA_entry")
    loop("LA_", PA)
else:
    loop("L_", PA)
INLOOP = False

def tail_g2(sS, part_reg):
    H = v.H; X = v.X
    for k in range(4): a(f"v_add_u32 {vr(H+20+k)}, s{sS}, {vr(v.aT+k)}")
    for du in range(2):
        for dt in range(2):
            a(f"ds_read_b64_tr_b16 {vr(X + 4*dt + 2*du, 2)}, {vr(H+20 + 2*du + dt)}")
    a(f"ds_read_b128 {vr(X+8,4)}, {vr(part_reg)}")
    for dt in range(2):
        a(f"{MF16} {vr(v.D2+4*dt,4)}, {vr(X+8,4)}, {vr(X+4*dt,4)}, {vr(v.D2+4*dt,4)}")
H = v.H
a.label("L_tail")
a(f"s_mov_b32 s{sTgtC}, s{sTgtR}")
emit(prio(2))
spin("L_tspin0", None)
a.begin_auto()
emit(score_mfma())
a(f"v_add_u32 {vr(H+24)}, s{sPc}, {vr(v.partW)}")
emit(fin(0, H+24))
a(f"v_add_u32 {vr(H+26)}, s{sPb}, {vr(v.partR)}")
tail_g2(sSb, H+26)
a.end_auto()
a(f"s_bitcmp1_b32 s{sLAST}, 0")
a(f"s_cbranch_scc0 L_t1")
epilogue()
a.label("L_t1")
a(f"s_add_u32 s{sTgtC}, s{sTgtC}, 4")
emit(arrive())
spin("L_tspin", None)
a.begin_auto()
a(f"v_add_u32 {vr(H+26)}, s{sPc}, {vr(v.partR)}")
tail_g2(sSc, H+26)
a.end_auto()
epilogue()
if DEBUG_TS:
    ts(5)
    a(f"s_load_dwordx2 {sp(sTgt)}, s[0:1], 72")
    a("s_waitcnt vmcnt(0) lgkmcnt(0)")
    a(f"s_mov_b32 s{sTgt+2}, 0x100000")
    a(f"s_mov_b32 s{sTgt+3}, 0x00020000")
    a(f"s_lshl_b32 s{sT0+2}, s2, 2")
    a(f"s_add_u32 s{sT0+2}, s{sT0+2}, s{sW}")
    a(f"s_lshl_b32 s{sT0+2}, s{sT0+2}, 5")
    a(f"v_mov_b32 v0, s{sT0+2}")
    for k in range(6):
        a(f"v_mov_b32 v{4+k}, s{TSREG[k]}")
    a(f"s_lshl_b32 s3, s3, 8")
    a(f"s_or_b32 s3, s3, s{sNT}")
    a(f"v_mov_b32 v10, s3")
    a(f"s_getreg_b32 s{sT0+3}, hwreg(HW_REG_HW_ID)")
    a(f"s_getreg_b32 s{sT0+4}, hwreg(HW_REG_XCC_ID)")
    a(f"s_lshl_b32 s{sT0+4}, s{sT0+4}, 16")
    a(f"s_and_b32 s{sT0+3}, s{sT0+3}, 0xffff")
    a(f"s_or_b32 s{sT0+3}, s{sT0+3}, s{sT0+4}")
    a(f"v_mov_b32 v11, s{sT0+3}")
    a("s_mov_b64 exec, 1")
    a(f"buffer_store_dwordx4 v[4:7], v0, {srd(sTgt)}, 0 offen")
    a(f"buffer_store_dwordx4 v[8:11], v0, {srd(sTgt)}, 0 offen offset:16")
    if FL("ilog"):
        a("v_lshlrev_b32 v0, 1, v0"); a("v_add_u32 v0, 0x40000, v0")
        for k in range(12): a(f"v_mov_b32 v{12+k}, s{56+k}")
        a("v_mov_b32 v24, s86"); a("v_mov_b32 v25, s87")
        for k in range(4): a(f"buffer_store_dwordx4 v[{12+4*k}:{15+4*k}], v0, {srd(sTgt)}, 0 offen offset:{16*k}")
a("s_waitcnt vmcnt(0)")
a.label("L_end")
a("s_endpgm")

body_txt = a.finalize()
hdr = open("cdna_kernels/" + NAME + ".s.ref").read()
head = hdr[:hdr.index("; @launch")]
out = head + f"""; @launch grid=(256,1,1) block=(512,1,1) lds={LDS_BYTES}
.amdgcn_target "amdgcn-amd-amdhsa--gfx950"
.text
.globl {NAME}_kernel
.p2align 8
.type {NAME}_kernel,@function
{NAME}_kernel:
{body_txt}
.section .rodata,"a"
.p2align 6
.amdhsa_kernel {NAME}_kernel
  .amdhsa_next_free_vgpr {NVGPR}
  .amdhsa_next_free_sgpr 102
  .amdhsa_accum_offset 256
  .amdhsa_group_segment_fixed_size 0
  .amdhsa_kernarg_size 80
  .amdhsa_user_sgpr_count 2
  .amdhsa_user_sgpr_kernarg_segment_ptr 1
  .amdhsa_system_sgpr_workgroup_id_x 1
.end_amdhsa_kernel
"""
outp = [x for x in sys.argv[1:] if not x.startswith("--")]
path = outp[0] if outp else "cdna_kernels/" + NAME + ".s"
open(path, "w").write(out)
print("wrote", path, "lines", out.count("\n"), "nops", a.padded)
```

```python
import sys
from asmlib import Asm

NAME = "standalone__sequential_behavior_din__recsys"
DEBUG_TS = "--ts" in sys.argv
FL = lambda x: ("--" + x) in sys.argv
def OPT(name, default):
    for x in sys.argv:
        if x.startswith("--" + name + "="): return x.split("=", 1)[1]
    return default

MISC0 = 131072
IDX = 0
MASKL = 3584
PART = 7232
BIAS = 8000
DIAG = 12096
CNT = 16320
LDS_BYTES = 163840
assert CNT + 32 <= 16384

FL0 = lambda x: ("--" + x) in sys.argv
class V: pass
v = V()
def vr(a, n=1):
    return f"v{a}" if n == 1 else f"v[{a}:{a+n-1}]"
v.aH = 0; v.aT = 4; v.idxA = 8; v.idx = 9; v.lane_off = 10; v.maskA = 11
v.m0 = 12; v.m1 = 13; v.partW = 14; v.partR = 15; v.aDiag = 16; v.diagW = 18
v.biasA = 19; v.outA = 20; v.tmp = 21; v.b2c = 22; v.Q = 24; v.D3 = 28; v.D2 = 32
v.A3 = 40; v.BR = 48; v.Y = 64; v.X = 80; v.Y0 = 64; v.Y1 = 80; v.H = 96; v.WAC = 128; v.WD = 192; v.WE = 224
NVGPR = 256
v.tmp2 = v.D2

sHist = 4; sW1 = 8; sOut = 12; sTgt = 16; sMask = 20; sB1 = 24; sW2 = 28; sB2 = 32
sEND = 34; sW = 36; sWoff = 37; sG = 38; sNT = 39; sFIRST = 40; sLAST = 42
sDelta = 44; sMB = 45; sSel = 46; sC = 48; sB2v = 49
sT0 = 50
sP = 70
sBal = 80
sRet = 94
sTgtC = 93
sTgtR = 92
sCv = 55
sFav = 38
LIGHT = FL0('light')
sLIGHT = 88
CTR = 512

a = Asm()
TSREG = {0: 96, 1: 97, 2: 98, 3: 99, 4: 100, 5: 101}
TSMAP = dict(zip(OPT("tsmap", "B1,B2a,B2b,B4").split(","), (1, 2, 3, 4)))
def ts(k):
    if not DEBUG_TS: return
    name = k
    if isinstance(k, str) and k not in TSMAP and k != "B4": return
    slot = TSMAP.get(k, None) if isinstance(k, str) else k
    if slot is not None:
        a(f"{'s_memtime' if FL('tscyc') else 's_memrealtime'} s[{sT0+18}:{sT0+19}]")
        a("s_waitcnt lgkmcnt(0)")
        a(f"s_mov_b32 s{TSREG[slot]}, s{sT0+18}")
    if name == "B4" or name == 5:
        a(f"s_memtime s[{sT0+18}:{sT0+19}]")
        a("s_waitcnt lgkmcnt(0)")
        if name == "B4": a(f"s_mov_b32 s3, s{sT0+18}")
        else: a(f"s_sub_u32 s3, s{sT0+18}, s3")

PROF = FL("prof")
def pm(k):
    return [f"s_memtime s[{80+2*k}:{81+2*k}]"] if PROF else []
def pacc():
    if not PROF: return []
    return ["s_sub_u32 s91, s82, s80", "s_add_u32 s97, s97, s91", "s_sub_u32 s91, s84, s82", "s_add_u32 s98, s98, s91",
            "s_sub_u32 s91, s86, s84", "s_add_u32 s99, s99, s91"]
def srd(r): return f"s[{r}:{r+3}]"
def sp(r): return f"s[{r}:{r+1}]"

def dma_a(voff, srdreg, soff, slot, nt):
    f = " nt" if nt else ""
    return [f"s_add_u32 m0, s{sWoff}, {slot*8192}",
            f"buffer_load_dwordx4 {vr(voff)}, {srd(srdreg)}, {soff} offen{f} lds"]
def dma_b(voff, srdreg, soff, slot, nt):
    f = " nt" if nt else ""
    return [f"s_add_u32 m0, s{sWoff}, {slot*8192 + 4096 - 128}",
            f"buffer_load_dwordx4 {vr(voff)}, {srd(srdreg)}, {soff} offen offset:128{f} lds"]
INLOOP = False
def emit(lst):
    for x in [y for z in lst for y in z.split("\n")]:
        if INLOOP and FL("nodma") and x.startswith("buffer_load"): continue
        if INLOOP and FL("nosig") and x.startswith(("v_exp", "v_rcp", "v_add_f32")): continue
        if INLOOP and FL("nog1") and x.startswith("v_mfma_f32_32x32"): continue
        if x.startswith("; skip"): continue
        a(x)
def dma(voff, srdreg, soff, slot, nt):
    emit(dma_a(voff, srdreg, soff, slot, nt)); emit(dma_b(voff, srdreg, soff, slot, nt))

MF32 = "v_mfma_f32_32x32x16_bf16"
MF16 = "v_mfma_f32_16x16x32_bf16"
NT_HIST = not FL("nont")

a("s_cmp_ge_u32 s2, 256")
a("s_cbranch_scc1 L_end")
ts(0)
a(f"s_load_dwordx2 {sp(sMask)}, s[0:1], 16")
a(f"s_load_dwordx2 {sp(sW1)}, s[0:1], 24")
a(f"s_load_dwordx2 {sp(sTgt)}, s[0:1], 0")
a(f"s_load_dwordx2 {sp(sB1)}, s[0:1], 32")
a(f"s_load_dwordx2 {sp(sW2)}, s[0:1], 40")
a(f"s_load_dwordx2 {sp(sB2)}, s[0:1], 48")
a(f"s_load_dwordx2 {sp(sHist)}, s[0:1], 8")
a(f"s_load_dwordx2 {sp(sOut)}, s[0:1], 56")
tLane, tHi, tM, tQ, tN4, tA, tB, tC, tD, tE, tF, tG = [v.BR + i for i in range(12)]
NPF = int(OPT("pf", "0"))
if NPF:
    a(f"s_cmp_ge_u32 s2, {NPF}")
    a("s_cbranch_scc1 L_nopf")
    a(f"s_getpc_b64 {sp(sT0)}")
    a.label("L_pc")
    a(f"s_mov_b32 s{sT0+2}, L_end-L_pc")
    a("v_lshlrev_b32 v252, 6, v0")
    a(f"v_min_u32 v252, s{sT0+2}, v252")
    a(f"v_mov_b32 v253, s{sT0+1}")
    a(f"v_add_co_u32 v252, vcc, s{sT0}, v252")
    a("v_addc_co_u32 v253, vcc, 0, v253, vcc")
    a("global_load_dword v255, v[252:253], off")
    a.label("L_nopf")
PFA = int(OPT("pfa", "0"))
if PFA:
    a(f"s_getpc_b64 {sp(sT0)}")
    a.label("L_pc")
    a(f"s_mov_b32 s{sT0+2}, L_end-L_pc")
    a("v_lshlrev_b32 v252, 6, v0")
    if int(OPT("pfo", "0")): a(f"v_add_u32 v252, {int(OPT('pfo', '0'))}, v252")
    a(f"v_min_u32 v252, s{sT0+2}, v252")
    a(f"v_mov_b32 v253, s{sT0+1}")
    a(f"v_add_co_u32 v252, vcc, s{sT0}, v252")
    a("v_addc_co_u32 v253, vcc, 0, v253, vcc")
a(f"v_lshrrev_b32 {vr(tA)}, 6, v0")
a(f"v_and_b32 {vr(tLane)}, 63, v0")
a(f"v_readfirstlane_b32 s{sT0}, {vr(tA)}")
a(f"v_and_b32 v0, 255, v0")
a(f"v_lshrrev_b32 {vr(tHi)}, 5, {vr(tLane)}")
a(f"v_and_b32 {vr(tM)}, 31, {vr(tLane)}")
a(f"v_lshrrev_b32 {vr(tQ)}, 4, {vr(tLane)}")
a(f"v_and_b32 {vr(tN4)}, 15, {vr(tLane)}")
a(f"s_and_b32 s{sW}, s{sT0}, 3")
a(f"s_lshr_b32 s{sG}, s{sT0}, 2")
a(f"s_lshl_b32 s2, s2, 1")
a(f"s_add_u32 s2, s2, s{sG}")
a(f"s_lshl_b32 s{sWoff}, s{sW}, 10")
a(f"s_lshl_b32 s{sT0}, s{sG}, 16")
a(f"s_add_u32 s{sWoff}, s{sWoff}, s{sT0}")
a(f"s_lshl_b32 s{sMB}, s{sG}, 14")
a(f"s_add_u32 s{sMB}, s{sMB}, {MISC0}")
a(f"s_mov_b32 s{sC}, 0xBFB8AA3B")
a(f"v_lshlrev_b32 {vr(tA)}, 3, {vr(tLane)}")
a(f"s_mul_i32 s{sT0}, s{sW}, 800")
a(f"v_add_u32 {vr(tA)}, s{sT0}, {vr(tA)}")
a(f"v_mov_b32 {vr(tB)}, 0x10000")
a(f"v_cmp_gt_u32 vcc, 50, {vr(tLane)}")
a(f"v_cndmask_b32 {vr(tA)}, {vr(tB)}, {vr(tA)}, vcc")
a(f"v_lshrrev_b32 {vr(tB)}, 3, {vr(tLane)}")
a(f"s_lshl_b32 s{sT0}, s{sW}, 3")
a(f"v_add_u32 {vr(tB)}, s{sT0}, {vr(tB)}")
a(f"v_and_b32 {vr(tD)}, 7, {vr(tLane)}")
a(f"v_and_b32 {vr(tC)}, 2, {vr(tB)}")
a(f"v_lshlrev_b32 {vr(tC)}, 1, {vr(tC)}")
a(f"v_xor_b32 {vr(tC)}, {vr(tC)}, {vr(tD)}")
a(f"v_lshlrev_b32 {vr(tC)}, 4, {vr(tC)}")
v.wv = v.Q
a(f"v_lshl_add_u32 {vr(v.wv)}, {vr(tB)}, 8, {vr(tC)}")
a(f"s_mul_i32 s{sT0}, s2, 3200")
a("s_waitcnt lgkmcnt(0)")
a(f"s_add_u32 s{sMask}, s{sMask}, s{sT0}")
a(f"s_addc_u32 s{sMask+1}, s{sMask+1}, 0")
a(f"s_mov_b32 s{sMask+2}, 3200")
a(f"s_mov_b32 s{sMask+3}, 0x00020000")
ts("karg")
MK = v.Y1
a(f"buffer_load_dwordx2 {vr(MK,2)}, {vr(tA)}, {srd(sMask)}, 0 offen")
a(f"buffer_load_dwordx2 {vr(MK+2,2)}, {vr(tA)}, {srd(sMask)}, 0 offen offset:400")
if PFA:
    a(f"s_cmp_lt_u32 s2, {2*PFA}")
    a("s_cselect_b64 exec, -1, 1")
    a("global_load_dword v255, v[252:253], off")
    a("s_mov_b64 exec, -1")
a(f"s_load_dword s{sB2v}, {sp(sB2)}, 0")
a(f"s_mov_b32 s{sW1+2}, 131072")
a(f"s_mov_b32 s{sW1+3}, 0x00020000")
sWs = 79; sWb = 3
a(f"s_lshl_b32 s{sWb}, s{sG}, 16")
def wdma(s):
    return [[f"s_add_u32 s{sWs}, s{sWb}, {s*8192}"] + dma_a(v.wv, sW1, f"s{sWs}", s, False),
            dma_b(v.wv, sW1, f"s{sWs}", s, False)]
WD_ = [x for s_ in range(8) for x in wdma(s_)]
def cut(mark):
    blk = a.lines[mark:]
    del a.lines[mark:]
    return blk
def interleave(chunks, blk):
    n = len(chunks)
    pos = [int(len(blk) * (k + 0.3) / n) for k in range(n)] if n else []
    k = 0
    full = True
    for i, l in enumerate(blk):
        ok = full and not (l.startswith(("s_addc", "s_cselect", "s_cbranch", "s_movrels")) or l.endswith(":"))
        while k < n and i >= pos[k] and ok:
            for x in chunks[k]: a(x)
            k += 1
        a(l)
        if l.startswith("s_mov_b64 exec"): full = l.endswith("-1")
    while k < n:
        for x in chunks[k]: a(x)
        k += 1
NA = 16
a(f"s_lshl_b32 s{sT0}, s2, 11")
a(f"s_add_u32 s{sTgt}, s{sTgt}, s{sT0}")
a(f"s_addc_u32 s{sTgt+1}, s{sTgt+1}, 0")
a(f"s_mov_b32 s{sTgt+2}, 2048")
a(f"s_mov_b32 s{sTgt+3}, 0x00020000")
a(f"s_mov_b32 s{sB1+2}, 256")
a(f"s_mov_b32 s{sB1+3}, 0x00020000")
a(f"s_mov_b32 s{sW2+2}, 256")
a(f"s_mov_b32 s{sW2+3}, 0x00020000")
a(f"s_lshl_b32 s{sT0}, s{sW}, 10")
a(f"s_add_u32 s{sT0}, s{sT0}, s{sMB}")
a(f"s_add_u32 m0, s{sT0}, {BIAS}")
a(f"s_cmp_ge_u32 s{sW}, 2")
a("s_cbranch_scc1 L_stg_bw")
a(f"s_lshl_b32 s{sT0}, s{sW}, 2")
a(f"v_add_u32 {vr(tA)}, s{sT0}, {vr(tQ)}")
a(f"v_xor_b32 {vr(tC)}, {vr(tA)}, {vr(tN4)}")
a(f"v_lshlrev_b32 {vr(tC)}, 4, {vr(tC)}")
a(f"v_lshl_add_u32 {vr(tC)}, {vr(tA)}, 8, {vr(tC)}")
a(f"buffer_load_dwordx4 {vr(tC)}, {srd(sTgt)}, 0 offen lds")
a("s_branch L_stg_done")
a.label("L_stg_bw")
a(f"v_lshlrev_b32 {vr(tC)}, 4, {vr(tLane)}")
a(f"s_cmp_eq_u32 s{sW}, 2")
a("s_cbranch_scc0 L_stg_w2")
a(f"buffer_load_dwordx4 {vr(tC)}, {srd(sB1)}, 0 offen lds")
a("s_branch L_stg_done")
a.label("L_stg_w2")
a(f"buffer_load_dwordx4 {vr(tC)}, {srd(sW2)}, 0 offen lds")
a.label("L_stg_done")
NSTG = 1
wv8 = sT0 + 2
if FL("tw"):
    a(f"s_lshr_b32 s{sT0}, s2, 1")
    a(f"s_lshr_b32 s{sT0+1}, s{sT0}, 3")
    a(f"s_xor_b32 s{sT0}, s{sT0}, s{sT0+1}")
    a(f"s_lshr_b32 s{sT0+1}, s{sT0+1}, 2")
    a(f"s_xor_b32 s{sT0}, s{sT0}, s{sT0+1}")
    a(f"s_and_b32 s{sT0}, s{sT0}, 7")
    a(f"s_lshl_b32 s{sT0}, s{sT0}, 14")
    a(f"s_lshl_b32 s{sT0+1}, s{sG}, 13")
    a(f"s_add_u32 s{sT0}, s{sT0}, s{sT0+1}")
    a(f"s_lshl_b32 s{sT0+1}, s{sW}, 11")
    a(f"s_add_u32 s{sT0}, s{sT0}, s{sT0+1}")
    a(f"v_lshlrev_b32 {vr(tC)}, 7, {vr(tN4)}")
    a(f"s_mov_b64 exec, 0xffff")
    a(f"buffer_load_dword {vr(v.b2c)}, {vr(tC)}, {srd(sW1)}, s{sT0} offen")
    a(f"s_mov_b64 exec, -1")
    NSTG += 1
a(f"s_mul_i32 s{sT0}, s2, {8*51200}")
a(f"s_add_u32 s{sHist}, s{sHist}, s{sT0}")
a(f"s_addc_u32 s{sHist+1}, s{sHist+1}, 0")
a(f"s_mov_b32 s{sHist+2}, {8*51200}")
a(f"s_mov_b32 s{sHist+3}, 0x00020000")
a(f"s_lshl_b32 s{sT0}, s2, 11")
a(f"s_add_u32 s{sOut}, s{sOut}, s{sT0}")
a(f"s_addc_u32 s{sOut+1}, s{sOut+1}, 0")
a(f"s_mov_b32 s{sOut+2}, 256")
a(f"s_mov_b32 s{sOut+3}, 0x00020000")

if FL("th"):
    a(f"s_lshl_b32 s{sT0}, s{sW}, 3")
    a(f"v_add_u32 {vr(tC)}, s{sT0}, {vr(tLane)}")
    a(f"v_lshlrev_b32 {vr(tC)}, 14, {vr(tC)}")
    a(f"s_mov_b64 exec, 0xff")
    a(f"buffer_load_dword {vr(v.b2c+1)}, {vr(tC)}, {srd(sHist)}, 0 offen")
    a(f"s_mov_b64 exec, -1")
    NSTG += 1
def addm(dst, const, src):
    a(f"s_add_u32 s{sT0+9}, s{sMB}, {const}")
    a(f"v_add_u32 {vr(dst)}, s{sT0+9}, {vr(src)}")

tH, tI = v.BR + 12, v.BR + 13
sRB = sT0 + 8
sgT = v.Y0
aW = v.D3
tBW = v.tmp

def blk_fill():
    F4 = v.H
    a(f"v_lshlrev_b32 {vr(tA)}, 4, v0")
    addm(tA, 0, tA)
    a(f"v_mov_b32 {vr(tB)}, 0")
    a(f"v_cmp_gt_u32 vcc, 224, v0")
    for i in range(4, 8): a(f"v_mov_b32 {vr(F4+i)}, 0")
    a(f"v_mov_b32 {vr(tC)}, -1")
    a(f"v_cndmask_b32 {vr(F4)}, {vr(tB)}, {vr(tC)}, vcc")
    for i in range(1, 4): a(f"v_mov_b32 {vr(F4+i)}, {vr(F4)}")
    a(f"ds_write_b128 {vr(tA)}, {vr(F4,4)}")
    a(f"v_add_u32 {vr(tC)}, 4096, {vr(tA)}")
    a(f"s_add_u32 s{sT0}, s{sMB}, {BIAS-16}")
    a(f"v_min_u32 {vr(tC)}, s{sT0}, {vr(tC)}")
    a(f"ds_write_b128 {vr(tC)}, {vr(F4+4,4)}")
    a(f"ds_write_b128 {vr(tA)}, {vr(F4+4,4)} offset:{DIAG}")
    a(f"v_add_u32 {vr(tC)}, {DIAG+4096}, {vr(tA)}")
    a(f"s_add_u32 s{sT0}, s{sMB}, {DIAG+4224-16}")
    a(f"v_min_u32 {vr(tC)}, s{sT0}, {vr(tC)}")
    a(f"ds_write_b128 {vr(tC)}, {vr(F4+4,4)}")

def phi(dst, r, t):
    a(f"v_lshrrev_b32 {vr(dst)}, 2, {vr(r)}")
    a(f"v_and_b32 {vr(dst)}, 4, {vr(dst)}")
    a(f"v_lshrrev_b32 {vr(t)}, 1, {vr(r)}")
    a(f"v_and_b32 {vr(t)}, 3, {vr(t)}")
    a(f"v_or_b32 {vr(dst)}, {vr(dst)}, {vr(t)}")

def blk_dma():
    a(f"v_lshrrev_b32 {vr(tB)}, 3, {vr(tLane)}")
    a(f"s_lshl_b32 s{sT0}, s{sW}, 3")
    a(f"v_add_u32 {vr(tB)}, s{sT0}, {vr(tB)}")
    phi(tC, tB, tD)
    a(f"v_and_b32 {vr(tD)}, 7, {vr(tLane)}")
    a(f"v_xor_b32 {vr(tC)}, {vr(tC)}, {vr(tD)}")
    a(f"v_lshlrev_b32 {vr(v.lane_off)}, 4, {vr(tC)}")
    a(f"v_lshlrev_b32 {vr(v.idxA)}, 1, {vr(tB)}")
    addm(v.idxA, IDX, v.idxA)

def blk_cd():
    a(f"v_and_b32 {vr(tH)}, 3, {vr(tN4)}")
    a(f"v_lshrrev_b32 {vr(tI)}, 1, {vr(tH)}")
    a(f"s_and_b32 s{sT0}, s{sW}, 1")
    a(f"s_lshl_b32 s{sT0}, s{sT0}, 2")
    a(f"v_or_b32 {vr(tI)}, s{sT0}, {vr(tI)}")
    a(f"v_and_b32 {vr(tH)}, 1, {vr(tH)}")
    a(f"v_lshlrev_b32 {vr(tH)}, 3, {vr(tH)}")
    a(f"s_lshr_b32 s{sT0+1}, s{sW}, 1")
    a(f"s_lshl_b32 s{sT0+1}, s{sT0+1}, 12")
    a(f"v_add_u32 {vr(tH)}, s{sT0+1}, {vr(tH)}")

def blk_aW():
    a(f"v_and_b32 {vr(tE)}, 1, {vr(tQ)}")
    a(f"v_lshl_or_b32 {vr(tD)}, {vr(tE)}, 1, {vr(tI)}")
    a(f"v_lshrrev_b32 {vr(tA)}, 2, {vr(tN4)}")
    a(f"v_lshl_add_u32 {vr(tB)}, {vr(tHi)}, 3, {vr(tA)}")
    a(f"v_and_b32 {vr(tF)}, 2, {vr(tA)}")
    a(f"v_lshlrev_b32 {vr(tF)}, 1, {vr(tF)}")
    a(f"v_xor_b32 {vr(tF)}, {vr(tF)}, {vr(tD)}")
    a(f"v_lshl_add_u32 {vr(tF)}, {vr(tF)}, 4, {vr(tH)}")
    for f in range(2):
        for u in range(2):
            a(f"v_add_u32 {vr(tE)}, {16*f + 4*u}, {vr(tB)}")
            a(f"v_lshl_add_u32 {vr(aW + 2*f + u)}, {vr(tE)}, 7, {vr(tF)}")

def blk_aH():
    a(f"s_lshl_b32 s{sRB}, s{sG}, 16")
    phi(tA, tM, tB)
    a(f"v_xor_b32 {vr(tA)}, {vr(tA)}, {vr(tHi)}")
    a(f"v_lshlrev_b32 {vr(tB)}, 7, {vr(tM)}")
    a(f"v_add_u32 {vr(tB)}, s{sRB}, {vr(tB)}")
    for k in range(4):
        a(f"v_xor_b32 {vr(tC)}, {2*k}, {vr(tA)}")
        a(f"v_lshl_add_u32 {vr(v.aH+k)}, {vr(tC)}, 4, {vr(tB)}")

def blk_aT():
    a(f"s_lshl_b32 s{sRB}, s{sG}, 16")
    a(f"v_lshrrev_b32 {vr(tA)}, 2, {vr(tN4)}")
    a(f"v_and_b32 {vr(tB)}, 1, {vr(tA)}")
    a(f"v_lshlrev_b32 {vr(tB)}, 4, {vr(tB)}")
    a(f"v_lshrrev_b32 {vr(tA)}, 1, {vr(tA)}")
    a(f"v_add_u32 {vr(tB)}, {vr(tA)}, {vr(tB)}")
    a(f"v_lshl_add_u32 {vr(tB)}, {vr(tQ)}, 2, {vr(tB)}")
    a(f"v_add_u32 {vr(tC)}, s{sRB}, {vr(tH)}")
    for u in range(2):
        a(f"v_add_u32 {vr(tE)}, {2*u}, {vr(tB)}")
        phi(tF, tE, tG)
        a(f"v_xor_b32 {vr(tF)}, {vr(tF)}, {vr(tI)}")
        a(f"v_lshl_add_u32 {vr(tE)}, {vr(tE)}, 7, {vr(tC)}")
        for dt in range(2):
            a(f"v_xor_b32 {vr(tG)}, {2*dt}, {vr(tF)}")
            a(f"v_lshl_add_u32 {vr(v.aT + 2*u + dt)}, {vr(tG)}, 4, {vr(tE)}")

def blk_part():
    a(f"s_lshl_b32 s{sT0}, s{sW}, 6")
    a(f"v_lshlrev_b32 {vr(tA)}, 2, {vr(tN4)}")
    a(f"v_add_u32 {vr(tA)}, s{sT0}, {vr(tA)}")
    addm(v.partW, PART, tA)
    a(f"v_and_b32 {vr(tA)}, 3, {vr(tN4)}")
    a(f"v_lshlrev_b32 {vr(tA)}, 6, {vr(tA)}")
    a(f"v_lshl_add_u32 {vr(tA)}, {vr(tQ)}, 4, {vr(tA)}")
    addm(v.partR, PART, tA)
    a(f"v_lshlrev_b32 {vr(tA)}, 1, {vr(tN4)}")
    addm(v.maskA, MASKL, tA)

def blk_diag():
    a(f"v_and_b32 {vr(tA)}, 0x13, {vr(tM)}")
    a(f"v_lshrrev_b32 {vr(tB)}, 1, {vr(tM)}")
    a(f"v_and_b32 {vr(tB)}, 4, {vr(tB)}")
    a(f"v_or_b32 {vr(tA)}, {vr(tA)}, {vr(tB)}")
    a(f"v_lshlrev_b32 {vr(tB)}, 1, {vr(tM)}")
    a(f"v_and_b32 {vr(tB)}, 8, {vr(tB)}")
    a(f"v_or_b32 {vr(tA)}, {vr(tA)}, {vr(tB)}")
    a(f"v_lshrrev_b32 {vr(tB)}, 2, {vr(tM)}")
    a(f"v_and_b32 {vr(tB)}, 1, {vr(tB)}")
    a(f"v_xor_b32 {vr(tB)}, {vr(tB)}, {vr(tHi)}")
    a(f"v_lshrrev_b32 {vr(tC)}, 4, {vr(tM)}")
    a(f"v_lshl_or_b32 {vr(tC)}, {vr(tB)}, 1, {vr(tC)}")
    a(f"v_lshlrev_b32 {vr(tD)}, 4, {vr(tA)}")
    a(f"v_mov_b32 {vr(tE)}, 512")
    for f in range(2):
        a(f"v_cmp_eq_u32 vcc, {f}, {vr(tC)}")
        a(f"v_cndmask_b32 {vr(tF)}, {vr(tE)}, {vr(tD)}, vcc")
        addm(v.aDiag + f, DIAG, tF)
    a(f"v_and_b32 {vr(tD)}, 7, {vr(tA)}")
    a(f"v_lshrrev_b32 {vr(tD)}, 1, {vr(tD)}")
    a(f"v_lshl_add_u32 {vr(tD)}, {vr(tC)}, 2, {vr(tD)}")
    a(f"v_and_b32 {vr(tE)}, 1, {vr(tM)}")
    a(f"v_lshlrev_b32 {vr(tE)}, 4, {vr(tE)}")
    a(f"v_mov_b32 {vr(tF)}, 0x3F80")
    a(f"v_lshlrev_b32 {vr(tE)}, {vr(tE)}, {vr(tF)}")
    a(f"v_mov_b32 {vr(tF)}, 0")
    for f in range(2):
        for rho in range(4):
            a(f"v_cmp_eq_u32 vcc, {4*f+rho}, {vr(tD)}")
            a(f"v_cndmask_b32 {vr(v.D2 + 4*f + rho)}, {vr(tF)}, {vr(tE)}, vcc")

def blk_diagW():
    a(f"s_mul_i32 s{sT0}, s{sW}, 528")
    a(f"v_and_b32 {vr(tA)}, 7, {vr(tM)}")
    a(f"v_lshlrev_b32 {vr(tA)}, 1, {vr(tA)}")
    a(f"v_lshl_add_u32 {vr(tA)}, {vr(tM)}, 4, {vr(tA)}")
    a(f"v_add_u32 {vr(tA)}, s{sT0}, {vr(tA)}")
    addm(v.diagW, DIAG, tA)

def blk_bias():
    a(f"s_lshl_b32 s{sT0}, s{sW}, 7")
    a(f"v_lshlrev_b32 {vr(tA)}, 4, {vr(tHi)}")
    a(f"v_add_u32 {vr(tA)}, s{sT0}, {vr(tA)}")
    addm(v.biasA, BIAS, tA)
    a(f"v_lshrrev_b32 {vr(tA)}, 2, {vr(tM)}")
    a(f"v_lshl_add_u32 {vr(tBW)}, {vr(tA)}, 9, {vr(v.biasA)}")
    a(f"s_lshl_b32 s{sT0}, s{sW}, 6")
    a(f"v_lshlrev_b32 {vr(tA)}, 1, {vr(tLane)}")
    a(f"v_add_u32 {vr(tA)}, s{sT0}, {vr(tA)}")
    a(f"v_mov_b32 {vr(tB)}, 0x40000000")
    a(f"v_cmp_gt_u32 vcc, 32, {vr(tLane)}")
    a(f"v_cndmask_b32 {vr(v.outA)}, {vr(tB)}, {vr(tA)}, vcc")

B1R = v.WAC + 32
TQ = v.WAC + 40
IX = [v.WAC + 48, v.b2c, v.b2c + 1, v.m0, v.m1]
aW1 = [v.WAC + 60 + k for k in range(4)]
TFR = v.Y
AD = v.WAC
AC = v.BR
sgT2 = v.WAC + 52
def blk_ad():
    for ks in range(8):
        a(f"v_xor_b32 {vr(AD+8+ks)}, {2*ks}, {vr(sgT+1)}")
        a(f"v_lshl_add_u32 {vr(AD+8+ks)}, {vr(AD+8+ks)}, 4, {vr(sgT)}")
    for b in range(8):
        a(f"v_xor_b32 {vr(AD+b)}, {b}, {vr(sgT+2)}")
        a(f"v_lshl_add_u32 {vr(AD+b)}, {vr(AD+b)}, 4, {vr(sgT+3)}")
    for k in range(4): a(f"v_add_u32 {vr(aW1[k])}, 0x10000, {vr(aW+k)}")

def blk_stg():
    a(f"v_lshrrev_b32 {vr(tA)}, 2, {vr(tM)}")
    a(f"v_lshlrev_b32 {vr(tB)}, 8, {vr(tA)}")
    addm(sgT, BIAS, tB)
    a(f"v_xor_b32 {vr(sgT+1)}, {vr(tA)}, {vr(tHi)}")
    a(f"s_lshl_b32 s{sT0}, s{sW}, 2")
    a(f"v_lshrrev_b32 {vr(tA)}, 3, {vr(tM)}")
    a(f"v_add_u32 {vr(sgT+2)}, s{sT0}, {vr(tA)}")
    a(f"v_and_b32 {vr(tA)}, 7, {vr(tM)}")
    a(f"v_lshlrev_b32 {vr(tA)}, 1, {vr(tA)}")
    addm(sgT+3, BIAS, tA)
    a(f"s_lshl_b32 s{sT0}, s{sW}, 6")
    a(f"v_lshlrev_b32 {vr(tA)}, 3, {vr(tHi)}")
    a(f"v_add_u32 {vr(tA)}, s{sT0}, {vr(tA)}")
    addm(sgT2, BIAS + 2048, tA)
    a(f"v_xor_b32 {vr(tA)}, {vr(tQ)}, {vr(tN4)}")
    a(f"v_and_b32 {vr(tA)}, 1, {vr(tA)}")
    a(f"v_lshlrev_b32 {vr(tA)}, 9, {vr(tA)}")
    a(f"v_lshrrev_b32 {vr(tB)}, 1, {vr(tQ)}")
    a(f"v_lshl_add_u32 {vr(tA)}, {vr(tB)}, 3, {vr(tA)}")
    a(f"v_add_u32 {vr(tA)}, s{sT0}, {vr(tA)}")
    addm(sgT2+1, BIAS + 3072, tA)

def grab(fn):
    m = len(a.lines); fn(); return cut(m)
def weave(main, side, start=0):
    n = len(main); k = 0
    for i, x in enumerate(main):
        for y in x.split("\n"): a(y)
        want = (len(side) * (i + 1 - start)) // max(1, n - start) if i >= start else 0
        while k < want:
            a(side[k]); k += 1
    while k < len(side):
        a(side[k]); k += 1

LATE = {"aH": blk_aH, "aT": blk_aT, "part": blk_part, "bias": blk_bias, "diag": blk_diag, "diagW": blk_diagW}
late = [x for x in OPT("late", "aH,aT,part,bias").split(",") if x]
early = [x for x in LATE if x not in late]
ND0 = int(OPT("nd0", "8"))
_m = len(a.lines)
blk_fill(); blk_dma(); blk_cd(); blk_aW(); blk_stg(); blk_ad()
for x in LATE: LATE[x]()
interleave(WD_[:ND0], cut(_m))
a(f"s_mov_b32 s{sSel}, 0xFFFF0000")
a(f"s_mov_b32 s{sSel+1}, 0xFFFF0000")
ts("static")
a(f"s_waitcnt vmcnt({ND0 + NSTG + (1 if PFA else 0)})")
ts("maskw")
_m = len(a.lines)
tP = v.Y1 + 4
for b in range(2):
    for e in range(4):
        src = MK + 2*b + (e >> 1)
        lit = "0x7fff" if e % 2 == 0 else "0x7fff0000"
        bal = sBal + 2 * (4*b + e)
        a(f"v_and_b32 {vr(tA)}, {lit}, {vr(src)}")
        a(f"v_cmp_ne_u32 {sp(bal)}, 0, {vr(tA)}")
for b in range(2):
    for e in range(4):
        bal = sBal + 2 * (4*b + e)
        a(f"v_mbcnt_lo_u32_b32 {vr(tP + 4*b + e)}, s{bal}, 0")
        a(f"v_mbcnt_hi_u32_b32 {vr(tP + 4*b + e)}, s{bal+1}, {vr(tP + 4*b + e)}")
        a(f"s_bcnt1_i32_b64 s{sT0 + 4*b + e}, {sp(bal)}")
for b in range(2):
    t0 = sT0 + 4*b
    a(f"s_add_u32 s{sT0+10}, s{t0}, s{t0+1}")
    a(f"s_add_u32 s{sT0+11}, s{sT0+10}, s{t0+2}")
    a(f"s_add_u32 s{sT0+8+b}, s{sT0+11}, s{t0+3}")
    a(f"s_mov_b32 s{t0+1}, s{t0}")
    a(f"s_mov_b32 s{t0}, 0")
    a(f"s_mov_b32 s{t0+2}, s{sT0+10}")
    a(f"s_mov_b32 s{t0+3}, s{sT0+11}")
    a(f"s_add_u32 s{sT0+12+b}, s{sT0+8+b}, 31")
    a(f"s_lshr_b32 s{sT0+12+b}, s{sT0+12+b}, 5")
    a(f"s_max_u32 s{sT0+12+b}, s{sT0+12+b}, 1")
    if LIGHT:
        a(f"s_sub_u32 s{sT0+10}, s{sT0+8+b}, 1")
        a(f"s_and_b32 s{sT0+16+b}, s{sT0+10}, 16")
a(f"s_lshl_b32 s{sT0+14}, s{sW}, 3")
a(f"s_add_u32 s{sT0+14}, s{sT0+14}, {CNT}")
a(f"s_add_u32 s{sT0+14}, s{sT0+14}, s{sMB}")
a(f"v_mov_b32 {vr(tA)}, s{sT0+14}")
tF2 = tF
assert tF2 % 2 == 0
a(f"v_mov_b32 {vr(tF2)}, s{sT0+12}")
a(f"v_mov_b32 {vr(tF2+1)}, s{sT0+13}")
a(f"ds_write_b64 {vr(tA)}, {vr(tF2,2)}")
tL = v.BR + 14
if LIGHT:
    a(f"v_mov_b32 {vr(tL)}, s{sT0+16}")
    a(f"v_mov_b32 {vr(tL+1)}, s{sT0+17}")
    a(f"ds_write_b64 {vr(tA)}, {vr(tL,2)} offset:32")
ND1 = int(OPT("nd1", "4"))
interleave(WD_[ND0:ND0+ND1], cut(_m))
a("s_waitcnt lgkmcnt(0)")
a("s_barrier")
ts("B1")
_m = len(a.lines)
tR = v.H + 8
a(f"s_add_u32 s{sT0+14}, s{sMB}, {CNT}")
a(f"v_mov_b32 {vr(tA)}, s{sT0+14}")
a(f"ds_read_b128 {vr(tR,4)}, {vr(tA)}")
a(f"ds_read_b128 {vr(tR+4,4)}, {vr(tA)} offset:16")
if LIGHT:
    a(f"v_and_b32 {vr(tL)}, 7, {vr(tLane)}")
    a(f"v_lshl_add_u32 {vr(tL)}, {vr(tL)}, 2, s{sT0+14}")
    a(f"ds_read_b32 {vr(tL)}, {vr(tL)} offset:32")
a(f"s_mov_b32 s{sDelta}, 2112")
a(f"v_lshlrev_b32 {vr(tB)}, 2, {vr(tLane)}")
a(f"s_mul_i32 s{sT0+16}, s{sW}, 400")
a(f"v_add_u32 {vr(tB)}, s{sT0+16}, {vr(tB)}")
a("s_waitcnt lgkmcnt(0)")
for j in range(8):
    a(f"v_readfirstlane_b32 s{sP+1+j}, {vr(tR+j)}")
a(f"s_mov_b32 s{sP}, 0")
if LIGHT: a(f"v_cmp_eq_u32 vcc, 0, {vr(tL)}")
for j in range(8):
    a(f"s_add_u32 s{sP+1+j}, s{sP+1+j}, s{sP+j}")
a(f"s_lshl_b32 m0, s{sW}, 1")
a(f"s_movrels_b32 s{sT0+14}, s{sP}")
a(f"s_movrels_b32 s{sT0+15}, s{sP+1}")
for b in range(2):
    a(f"s_lshl_b32 s{sT0+14+b}, s{sT0+14+b}, 6")
    a(f"s_add_u32 s{sT0+14+b}, s{sT0+14+b}, s{sMB}")
    for e in range(4):
        bal = sBal + 2 * (4*b + e)
        a(f"s_lshl_b32 s{sT0+16}, s{sT0+4*b+e}, 1")
        a(f"s_add_u32 s{sT0+16}, s{sT0+16}, s{sT0+14+b}")
        a(f"v_lshl_add_u32 {vr(tC if e % 2 == 0 else tE)}, {vr(tP+4*b+e)}, 1, s{sT0+16}")
        a(f"v_add_u32 {vr(tD if e % 2 == 0 else tG)}, {200*b + e}, {vr(tB)}")
        a(f"s_mov_b64 exec, {sp(bal)}")
        a(f"ds_write_b16 {vr(tC if e % 2 == 0 else tE)}, {vr(tD if e % 2 == 0 else tG)} offset:{IDX}")
        op = "ds_write_b16" if e % 2 == 0 else "ds_write_b16_d16_hi"
        a(f"{op} {vr(tC if e % 2 == 0 else tE)}, {vr(MK + 2*b + (e>>1))} offset:{MASKL + 64}")
        a(f"s_mov_b64 exec, -1")
a(f"s_mov_b32 s{sNT}, s{sP+8}")
a(f"s_mov_b64 {sp(sFIRST)}, 0")
a(f"s_mov_b64 {sp(sLAST)}, 0")
if LIGHT: a(f"s_mov_b64 {sp(sLIGHT)}, 0")
for j in range(8):
    if j > 0:
        a(f"s_lshl_b64 {sp(sT0+16)}, 1, s{sP+j}")
        a(f"s_or_b64 {sp(sFIRST)}, {sp(sFIRST)}, {sp(sT0+16)}")
        if LIGHT:
            a(f"s_bitcmp1_b32 vcc_lo, {j-1}")
            a(f"s_cselect_b64 {sp(sT0+18)}, {sp(sT0+16)}, 0")
            a(f"s_or_b64 {sp(sLIGHT)}, {sp(sLIGHT)}, {sp(sT0+18)}")
    a(f"s_add_u32 s{sT0+18}, s{sP+j+1}, 1")
    a(f"s_lshl_b64 {sp(sT0+16)}, 1, s{sT0+18}")
    a(f"s_or_b64 {sp(sLAST)}, {sp(sLAST)}, {sp(sT0+16)}")
a(f"s_sub_u32 s{sT0+18}, s{sNT}, 1")
a(f"s_lshl_b64 {sp(sEND)}, 1, s{sT0+18}")
if FL("lightall"): a(f"s_mov_b64 {sp(sLIGHT)}, {sp(sFIRST)}")
if FL("nofirst"): a(f"s_mov_b64 {sp(sFIRST)}, 0")
if FL("nolast"): a(f"s_mov_b64 {sp(sLAST)}, 0")
interleave(WD_[ND0+ND1:], cut(_m))
ts("lists")
a(f"s_waitcnt vmcnt({OPT('b2vm', '8')}) lgkmcnt(0)")
a("s_barrier")
ts("B2a")
def tr_list(dst, slot0, base, tiles=range(4)):
    return [f"ds_read_b64_tr_b16 {vr(dst + 8*T + 4*f + 2*u, 2)}, {vr(base[2*f + u])} offset:{(slot0+T)*8192}"
            for T in tiles for f in range(2) for u in range(2)]
aW0 = [aW + k for k in range(4)]
def qshift():
    return [f"v_alignbit_b32 {vr(v.Q+k)}, {vr(v.Q+k+1)}, {vr(v.Q+k)}, 16" for k in range(3)] + \
           [f"v_lshrrev_b32 {vr(v.Q+3)}, 16, {vr(v.Q+3)}"]
Fr = lambda f: vr(v.D2 + 4*f, 4)
def wac(T):
    D = vr(v.WAC + 16*T, 16)
    return [f"{MF32} {D}, {Fr(0)}, {vr(v.WE + 8*T, 4)}, 0", f"{MF32} {D}, {Fr(1)}, {vr(v.WE + 8*T + 4, 4)}, {D}",
            f"{MF32} {D}, {Fr(0)}, {vr(v.H + 8*T, 4)}, {D}", f"{MF32} {D}, {Fr(1)}, {vr(v.H + 8*T + 4, 4)}, {D}"]
def scale(r, n):
    return [f"v_mul_f32 {vr(r+i)}, s{sC}, {vr(r+i)}\nv_mul_f32 {vr(r+i+1)}, s{sC}, {vr(r+i+1)}" for i in range(0, n, 2)]
Dc = [f"{MF32} {vr(AC,16)}, {vr(v.H + 4*ks, 4)}, {vr(TFR + 4*ks, 4)}, {'0' if ks == 0 else vr(AC,16)}" for ks in range(8)]
Db = [f"{MF32} {vr(AC,16)}, {vr(v.H + 4*ks, 4)}, {vr(TFR + 4*ks, 4)}, {vr(AC,16)}" for ks in range(8)]
def mix(mf, other):
    out = []; n = len(mf); k = 0
    for i, x in enumerate(mf):
        out.append(x)
        want = (len(other) * (i + 1)) // n
        out += other[k:want]; k = want
    return out
a.begin_auto()
Wc = lambda T: tr_list(v.H, 0, aW1, [T])
Wa = lambda T: tr_list(v.WE, 0, aW0, [T])
emit([f"ds_read_b128 {vr(TFR+4*ks,4)}, {vr(AD+8+ks)}" for ks in range(8)])
emit(Wc(0) + Wa(0))
emit([f"ds_read_u16_d16_hi {vr(TQ+b)}, {vr(AD+b)} offset:{256*b}" for b in range(8)])
emit(Wc(1) + Wa(1))
tq = [f"v_mul_f32 {vr(TQ+b)}, s{sC}, {vr(TQ+b)}" for b in range(8)]
tq += [f"v_cvt_pk_bf16_f32 {vr(v.Q+k)}, {vr(TQ+2*k)}, {vr(TQ+2*k+1)}" for k in range(4)]
tq += [f"ds_write_b16 {vr(v.diagW)}, {vr(v.Q)}"] + qshift() + [f"v_add_u32 {vr(v.diagW)}, 2112, {vr(v.diagW)}"]
small = [f"ds_read_u16 {vr(IX[t])}, {vr(v.idxA)} offset:{64*t}" for t in range(5)]
small += [f"ds_read_u16 {vr(v.idx)}, {vr(v.idxA)} offset:{64*5}"]
small2 = [f"ds_read_b64 {vr(B1R+2*i,2)}, {vr(sgT2)} offset:{16*i}" for i in range(4)]
small2 += [f"ds_read_b64 {vr(v.A3+4*g+2*hh,2)}, {vr(sgT2+1)} offset:{32*g+16*hh}" for g in range(2) for hh in range(2)]
w0, w1, w2, w3 = wac(0), wac(1), wac(2), wac(3)
emit(mix([Dc[0], Dc[1]] + w0, Wc(2) + Wa(2) + small + tq[:6]))
emit(mix([Dc[2], Dc[3]] + w1, Wc(3) + Wa(3) + small2 + tq[6:]))
for t in range(5):
    a(f"v_lshl_add_u32 {vr(IX[t])}, {vr(IX[t])}, 8, {vr(v.lane_off)}")
a.end_auto()
ts("preB3a")
a("s_waitcnt vmcnt(0) lgkmcnt(0)")
a("s_barrier")
ts("B3a")
def prep_parts():
    H = v.H; X = v.X; Y = v.Y
    D0 = vr(Y, 16); D1 = vr(H + 16, 16)
    p = {}
    p["qw"] = [f"ds_write_b16 {vr(v.diagW)}, {vr(v.Q)}"] + qshift() + [f"v_add_u32 {vr(v.biasA)}, 0x200, {vr(v.biasA)}"]
    p["rb"] = [f"ds_read_b128 {vr(v.BR + 4*i, 4)}, {vr(v.biasA)} offset:{32*i}" for i in range(4)]
    p["ptr"] = [f"v_add_u32 {vr(v.aDiag+f)}, s{sDelta}, {vr(v.aDiag+f)}" for f in range(2)] + \
               [f"s_sub_u32 s{sDelta}, 0, s{sDelta}", f"v_add_u32 {vr(v.diagW)}, s{sDelta}, {vr(v.diagW)}"]
    return p

dm = []
for t in range(4):
    dm += ["\n".join(dma_a(IX[t], sHist, "0", t, NT_HIST)), "\n".join(dma_b(IX[t], sHist, "0", t, NT_HIST))]
DPOS = [int(x) for x in OPT("dpos", "0,1,6,9,12,15,18,21").split(",")]
_mf = [0]
def emit_m(lst):
    for x in lst:
        emit([x])
        if x.startswith("v_mfma"):
            for j in range(8):
                if DPOS[j] == _mf[0]: emit([dm[j]])
            _mf[0] += 1
assert max(DPOS[:2]) < 2 and max(DPOS) < 26
a.begin_auto()
Wd = tr_list(v.WD, 4, aW0)
Wb = lambda T: tr_list(v.H, 4, aW0, [T])
B1F = v.WAC + 48
b1u = []
for i in range(4):
    b1u += [f"v_lshlrev_b32 {vr(B1F+4*i)}, 16, {vr(B1R+2*i)}", f"v_and_b32 {vr(B1F+4*i+1)}, 0xffff0000, {vr(B1R+2*i)}",
            f"v_lshlrev_b32 {vr(B1F+4*i+2)}, 16, {vr(B1R+2*i+1)}", f"v_and_b32 {vr(B1F+4*i+3)}, 0xffff0000, {vr(B1R+2*i+1)}"]
bsub = [f"v_sub_f32 {vr(AC+i)}, {vr(B1F+i)}, {vr(AC+i)}" for i in range(16)]
up = [f"v_add_u32 {vr(aW+k)}, 0x10000, {vr(aW+k)}" for k in range(4)]
dn = [f"v_subrev_u32 {vr(aW+k)}, 0x10000, {vr(aW+k)}" for k in range(4)]
s0, s1, s2, s3 = [scale(v.WAC + 16*T, 16) for T in range(4)]
X = v.X; Y = v.Y; H = v.H
emit_m([Dc[4]] + Wb(0) + [Dc[5]] + Wb(1) + up + [Dc[6]] + Wd[0:4] + b1u[0:8] + [Dc[7]] + Wd[4:8] + b1u[8:16])
emit_m(mix(w2, Wd[8:16] + dn + bsub))
emit_m([w3[0]] + Wb(2) + s0[0:3] + [w3[1]] + s0[3:6] + [w3[2]] + s0[6:8] + s1[0:2] + [w3[3]] + Wb(3) + s1[2:4])
emit([f"ds_read_b128 {vr(v.WE + 8*T + 4*f, 4)}, {vr(v.aDiag+f)} offset:{528*T}" for T in range(4) for f in range(2)])
ts("wac")
w2c = []
if FL("f16"):
    for i in range(8):
        w2c += [f"v_lshlrev_b32 {vr(v.tmp2)}, 16, {vr(v.A3+i)}", f"v_and_b32 {vr(v.A3+i)}, 0xffff0000, {vr(v.A3+i)}",
                f"v_cvt_pk_f16_f32 {vr(v.A3+i)}, {vr(v.tmp2)}, {vr(v.A3+i)}"]
emit_m(mix(Db, s1[4:8] + s2 + s3 + w2c))
WCTR = MISC0 + PART + 520
if not FL("b4"):
    a(f"v_mov_b32 {vr(v.D3)}, {WCTR}")
    a("s_mov_b64 exec, 1")
    a(f"ds_inc_u32 {vr(v.D3)}, {vr(v.D3)}")
    a("s_mov_b64 exec, -1")
ts("chain2")
PD = [Y, X, H, H + 16]
def P(T):
    D = vr(PD[T], 16)
    return [f"{MF32} {D}, {vr(v.WE+8*T,4)}, {vr(v.WD+8*T,4)}, {vr(v.WAC+16*T,16)}",
            f"{MF32} {D}, {vr(v.WE+8*T+4,4)}, {vr(v.WD+8*T+4,4)}, {D}"]
def cv(T):
    return [f"v_cvt_pk_bf16_f32 {vr(v.WE + 8*T + i)}, {vr(PD[T]+2*i)}, {vr(PD[T]+2*i+1)}" for i in range(8)]
p = prep_parts()
a(f"s_lshl_b32 s{sB2v}, s{sB2v}, 16")
a(f"s_cmp_eq_u32 s{sW}, 0")
a(f"s_cselect_b32 s{sB2v}, s{sB2v}, 0")
sc = scale(AC, 16)
bw = [f"ds_write_b128 {vr(tBW)}, {vr(AC+4*i,4)} offset:{32*i}" for i in range(4)]
zD = [f"v_mov_b32 {vr(v.D2+i)}, 0" for i in range(8)] + [f"v_mov_b32 {vr(v.D3+i)}, 0" for i in range(4)]
emit_m([P(0)[0]] + p["qw"][:-1] + [P(0)[1]] + p["ptr"] + zD[:4] + [P(1)[0]] + zD[4:] + [P(1)[1]])
emit_m(sc[:2] + bw[:1] + [P(2)[0]] + sc[2:4] + bw[1:2] + [P(2)[1]] + sc[4:6] + bw[2:3] + [P(3)[0]] + sc[6:8] + bw[3:4] + [P(3)[1]])
emit(cv(0))
a("s_waitcnt lgkmcnt(0)")
emit(p["rb"]); emit(p["qw"][-1:])
emit(cv(1))
a(f"v_mov_b32 {vr(v.b2c)}, s{sB2v}")
a(f"v_mov_b32 {vr(v.b2c+1)}, s{sB2v}")
for i in range(8): a(f"v_mov_b32 {vr(v.Y+i)}, 0")
emit(cv(2) + cv(3))
a.end_auto()
ts("prep0")
a(f"v_mov_b32 {vr(v.m0)}, 0")
a("s_waitcnt vmcnt(6) lgkmcnt(0)")
if FL("b4"):
    a("s_barrier")
else:
    a("s_mov_b64 exec, 1")
    a(f"ds_inc_u32 {vr(v.partR)}, {vr(v.partR)} offset:{CTR}")
    a("s_mov_b64 exec, -1")
    a(f"v_mov_b32 {vr(v.idx+0 if False else v.tmp)}, {WCTR}")
    a.label("LS_b4")
    a(f"ds_read_b32 {vr(v.D3)}, {vr(v.partR)} offset:{CTR}")
    a(f"ds_read_b32 {vr(v.D3+1)}, {vr(v.tmp)}")
    a("s_waitcnt lgkmcnt(0)")
    a(f"v_readfirstlane_b32 s{sT0}, {vr(v.D3)}")
    a(f"v_readfirstlane_b32 s{sT0+1}, {vr(v.D3+1)}")
    a(f"s_lshr_b32 s{sT0+1}, s{sT0+1}, 1")
    a(f"s_min_u32 s{sT0}, s{sT0}, s{sT0+1}")
    a(f"s_cmp_ge_u32 s{sT0}, 4")
    a("s_cbranch_scc0 LS_b4")
    a(f"v_mov_b32 {vr(v.D3)}, 0")
    a(f"v_mov_b32 {vr(v.D3+1)}, 0")
ts("B4")
dma(v.m1, sHist, "0", 4, NT_HIST)
a(f"v_mov_b32 {vr(v.m1)}, 0")
if PROF:
    for r in (97, 98, 99): a(f"s_mov_b32 s{r}, 0")
if FL("ilog"):
    a("s_memtime s[80:81]"); a("s_waitcnt lgkmcnt(0)"); a("s_mov_b32 s82, s80"); a("s_mov_b32 s84, 0")
    a(f"s_mov_b32 s86, s{sFIRST}"); a(f"s_mov_b32 s87, s{sLAST}")
    for r in range(56, 68): a(f"s_mov_b32 s{r}, 0")
a(f"s_mov_b32 s{sTgtR}, {0 if FL('b4') else 4}")
sOne = 68
a(f"s_mov_b32 s{sOne}, 1.0")
a(f"s_mov_b32 s{sOne+1}, 1.0")

F16 = FL("f16")
def sig_parts():
    Y = v.Y
    e = [f"v_exp_f32 {vr(Y+i)}, {vr(Y+i)}" for i in range(16)]
    if F16:
        c = [f"v_cvt_pk_f16_f32 {vr(Y+k)}, {vr(Y+2*k)}, {vr(Y+2*k+1)}" for k in range(8)]
        d = [f"v_pk_add_f16 {vr(Y+k)}, {vr(Y+k)}, 1.0 op_sel_hi:[1,0]" for k in range(8)]
        r = [f"v_rcp_f16_sdwa {vr(Y+k)}, {vr(Y+k)} dst_sel:WORD_{h} dst_unused:UNUSED_PRESERVE src0_sel:WORD_{h}" for h in range(2) for k in range(8)]
        return e, d, r, c
    d = [f"v_add_f32 {vr(Y+i)}, 1.0, {vr(Y+i)}" for i in range(16)]
    r = [f"v_rcp_f32 {vr(Y+i)}, {vr(Y+i)}" for i in range(16)]
    c = [f"v_cvt_pk_bf16_f32 {vr(Y+k)}, {vr(Y+2*k)}, {vr(Y+2*k+1)}" for k in range(8)]
    return e, d, r, c
def sig_stream():
    e, d, r, c = sig_parts()
    if F16: return e + c + d + r
    return e + d + r[:8] + c[:4] + r[8:] + c[4:]

def score_mfma():
    Y = v.Y
    MS = "v_mfma_f32_16x16x32_f16" if F16 else MF16
    S1 = f"{MS} {vr(v.D3,4)}, {vr(v.A3,4)}, {vr(Y,4)}, {vr(v.b2c,4)}"
    S2 = f"{MS} {vr(v.D3,4)}, {vr(v.A3+4,4)}, {vr(Y+4,4)}, {vr(v.D3,4)}"
    if FL("noS"): S1 = S2 = "; skip"
    return [S1, S2]

def fin(par_off, addr=None):
    return [f"v_mul_f32 {vr(v.D3)}, {vr(v.D3)}, {vr(v.m0)}",
            f"v_mul_f32 {vr(v.D3+1)}, {vr(v.D3+1)}, {vr(v.m1)}",
            f"v_cvt_pk_bf16_f32 {vr(v.D3)}, {vr(v.D3)}, {vr(v.D3+1)}",
            f"ds_write_b32 {vr(v.partW if addr is None else addr)}, {vr(v.D3)} offset:{par_off}"]

def epilogue():
    D2 = v.D2; T = v.H
    for dt in range(2):
        a(f"v_add_f32 {vr(T+2*dt)}, {vr(D2+4*dt)}, {vr(D2+4*dt+1)}")
        a(f"v_add_f32 {vr(T+2*dt+1)}, {vr(D2+4*dt+2)}, {vr(D2+4*dt+3)}")
    for dt in range(2):
        a(f"v_add_f32 {vr(T+2*dt)}, {vr(T+2*dt)}, {vr(T+2*dt+1)}")
    for i in range(8):
        a(f"v_mov_b32 {vr(D2+i)}, 0")
    a(f"v_cndmask_b32 {vr(T)}, {vr(T)}, {vr(T+2)}, {sp(sSel)}")
    a(f"v_cvt_pk_bf16_f32 {vr(T)}, {vr(T)}, {vr(T)}")
    a(f"buffer_store_short {vr(T)}, {vr(v.outA)}, {srd(sOut)}, 0 offen")
    a(f"s_add_u32 s{sOut}, s{sOut}, 256")
    a(f"s_addc_u32 s{sOut+1}, s{sOut+1}, 0")

def pieces(u, grp):
    H = v.H; X = v.X; Y = v.Y
    c = {}
    c["Rh"] = [f"ds_read_b128 {vr(H+4*ks,4)}, {vr(v.aH + (ks&3))} offset:{u*8192 + 4096*(ks>>2)}" for ks in range(8)]
    c["Ri"] = f"ds_read_u16 {vr(v.idx)}, {vr(v.idxA)} offset:{64*(u+6)}"
    mo = 64 * (u + 1)
    c["Rm"] = [f"ds_read_u16_d16_hi {vr(v.m0)}, {vr(v.maskA)} offset:{mo}",
               f"ds_read_u16_d16_hi {vr(v.m1)}, {vr(v.maskA)} offset:{mo+32}"]
    c["fin"] = fin(((u - 1) & 1) * 256)
    c["G"] = [f"{MF32} {vr(Y,16)}, {vr(v.WE+4*ks,4)}, {vr(H+4*ks,4)}, {vr(v.BR,16) if ks == 0 else vr(Y,16)}" for ks in range(8)]
    c["ix"] = f"v_lshl_add_u32 {vr(v.tmp)}, {vr(v.idx)}, 8, {vr(v.lane_off)}"
    c["da"] = dma_a(v.tmp, sHist, "0", (u+5) & 7, NT_HIST)
    c["db"] = dma_b(v.tmp, sHist, "0", (u+5) & 7, NT_HIST)
    slot = (u - 2) & 7
    c["Rt"] = [f"ds_read_b64_tr_b16 {vr(X + 4*dt + 2*du, 2)}, {vr(v.aT + 2*du + dt)} offset:{slot*8192}" for du in range(2) for dt in range(2)]
    c["Rp"] = f"ds_read_b128 {vr(X+8,4)}, {vr(v.partR)} offset:{(u&1)*256}"
    c["G2"] = [f"{MF16} {vr(v.D2+4*dt,4)}, {vr(X+8,4)}, {vr(X+4*dt,4)}, {vr(v.D2+4*dt,4)}" for dt in range(2)]
    c["S"] = score_mfma()
    GAP = int(OPT("gap", "-1"))
    if GAP >= 0:
        c["G"] = [x + f"\ns_nop {GAP}" for x in c["G"]]
    N = "; skip"
    if FL("nog2"): c["Rt"] = [N]*4; c["Rp"] = N; c["G2"] = [N]*2
    if FL("nofin"): c["fin"] = [N]*4
    if FL("noH"): c["Rh"] = [N]*8
    return c

PRIO = not FL("noprio")
def prio(n): return [f"s_setprio {n}"] if PRIO else []
def arrive():
    return ["s_mov_b64 exec, 1", f"ds_inc_u32 {vr(v.partR)}, {vr(v.partR)} offset:{CTR}", "s_mov_b64 exec, -1"]
def poll_rd(): return [f"ds_read_b32 {vr(v.tmp)}, {vr(v.partR)} offset:{CTR}"]
def poll_chk(target):
    return ["s_waitcnt lgkmcnt(0)", f"v_readfirstlane_b32 s{sCv}, {vr(v.tmp)}", f"s_cmp_ge_u32 s{sCv}, s{sTgtC}",
            f"s_cbranch_scc0 {target}"]
def spin(label, back):
    a.label(label)
    emit(poll_rd() + ["s_waitcnt lgkmcnt(0)", f"v_readfirstlane_b32 s{sCv}, {vr(v.tmp)}", f"s_cmp_ge_u32 s{sCv}, s{sTgtC}",
         f"s_cbranch_scc0 {label}"])
    if back: a(f"s_branch {back}")
HPRE = FL("hpre")
def with_sync(st, u, first, pr):
    st = list(st)
    RAISE = int(OPT("raise", "24"))
    if not HPRE:
        RD = len(st) - int(OPT("rdback", "10")); CHK = len(st); Rh = []
    else:
        Rh = pieces((u + 1) & 7, 0)["Rh"]
        RD = int(OPT("rdpos", "16")); CHK = int(OPT("chk", "32"))
        if first: RD, CHK = len(st) - 30, len(st) - 8
    pre, post = st[:CHK], st[CHK:]
    pre = pre[:RD] + poll_rd() + pre[RD:]
    if RAISE >= 0: pre = pre[:RAISE] + prio(pr[2]) + pre[RAISE:]
    if first:
        post = post + Rh
    else:
        out = []; q = list(Rh)
        for x in post:
            out.append(x)
            if q and x.startswith("v_rcp"): out.append(q.pop(0))
        post = out + q
    return pre, post

NH = int(OPT("nh", "2"))
TRIM = not FL("notrim")
def m_rest(u):
    c = pieces(u, 0)
    return c["G"][6], c["G"][7], c["G2"][0], c["G2"][1]
def m_phase(u):
    c = pieces(u, 0); G, Rh, Rt, S, Z = c["G"], c["Rh"], c["Rt"], c["S"], c["G2"]
    da, db, fin_ = c["da"], c["db"], c["fin"]
    tg = [f"s_add_u32 s{sTgtR}, s{sTgtR}, 4", f"s_bitcmp1_b32 s{sEND}, {u}", f"s_cselect_b32 s{sTgtC}, -1, s{sTgtR}"]
    s = Rh[:4] + [S[0]] + Rh[4:6] + [S[1]] + Rh[6:]
    ORD = OPT("mord", "a")
    if ORD == "e":
        s = Rh[:NH] + [S[0]] + Rh[NH:NH+2] + [S[1], G[0]] + Rh[NH+2:] + [c["ix"], da[0], c["Rp"], da[1], G[1]] + fin_
        s += [G[2], db[0], Rt[0], db[1], Rt[2], G[3], Rt[1], Rt[3], c["Ri"], G[4]] + c["Rm"] + tg + [G[5]]
        if not TRIM: s += [G[6], G[7], Z[0], Z[1]]
    if ORD == "a":
        s += [c["ix"], da[0], c["Rp"], da[1], G[0]] + fin_ + [G[1], db[0], Rt[0], db[1], Rt[2], G[2], Rt[1], Rt[3], c["Ri"], G[3]]
        s += c["Rm"] + tg + [G[4], G[5]]
        if not TRIM: s += [G[6], G[7], Z[0], Z[1]]
    return s

def v_prep(vp, light=False):
    H = v.H; X = v.X; Y = v.Y; BR = v.BR
    D0 = vr(H, 16); D1 = vr(H + 16, 16)
    e, d, r, c = sig_parts()
    fr = lambda T, f: (X if T < 2 else BR) + 8 * (T & 1) + 4 * f
    rd = [f"ds_read_b128 {vr(fr(T, f), 4)}, {vr(v.aDiag+f)} offset:{528*T}" for T in range(4) for f in range(2)]
    def P(T):
        D = D0 if T % 2 == 0 else D1
        m = [f"{MF32} {D}, {vr(fr(T,0),4)}, {vr(v.WD+8*T,4)}, {vr(v.WAC+16*T,16)}",
             f"{MF32} {D}, {vr(fr(T,1),4)}, {vr(v.WD+8*T+4,4)}, {D}"]
        if FL("pprio"): m = [f"s_setprio 3\n{x}\ns_setprio {vp}" for x in m]
        return m
    def cv(T):
        D = H if T % 2 == 0 else H + 16
        return [f"v_cvt_pk_bf16_f32 {vr(v.WE + 8*T + i)}, {vr(D+2*i)}, {vr(D+2*i+1)}" for i in range(8)]
    p = prep_parts()
    P0, P1, P2, P3 = P(0), P(1), P(2), P(3)
    if light:
        sw = [f"v_permlane16_swap_b32 {vr(Y+i)}, {vr(Y+8+i)}" for i in range(8)]
        mv = [f"v_mov_b32 {vr(Y+4+i)}, {vr(Y+i)}" for i in range(4)]
        s2 = [f"v_permlane16_swap_b32 {vr(Y+i)}, {vr(Y+4+i)}" for i in range(4)]
        LW = OPT("lw", "a")
        if LW == "a":
            s = sw + e[0:2] + ["s_waitcnt lgkmcnt(4)"]
            s += [P0[0]] + e[2:5] + [P0[1]] + e[5:8] + [P1[0]] + d[0:4] + [P1[1]] + d[4:8] + r[0:4]
            s += cv(0) + r[4:8] + cv(1)
            s += ["s_waitcnt lgkmcnt(0)", P2[0]] + c[0:4] + [P2[1]] + mv + [P3[0]] + s2 + [P3[1]]
            s += p["rb"] + p["qw"][1:] + p["ptr"] + cv(2) + cv(3)
        if LW == "b":
            s = sw + e[0:2] + ["s_waitcnt lgkmcnt(4)"]
            s += [P0[0]] + e[2:4] + [P1[0]] + e[4:6] + [P0[1]] + e[6:8] + [P1[1]] + d[0:8] + r[0:2]
            s += cv(0) + ["s_waitcnt lgkmcnt(0)", P2[0]] + r[2:5] + [P2[1]] + cv(1) + [P3[0]] + r[5:8] + [P3[1]]
            s += c[0:4] + mv + p["rb"] + s2 + p["qw"][1:] + p["ptr"] + cv(2) + cv(3)
        if LW in "defg":
            sz = [f"ds_swizzle_b32 {vr(Y+8+i)}, {vr(Y+8+i)} offset:0x401F" for i in range(8)]
            cm = [f"v_cndmask_b32 {vr(Y+i)}, {vr(Y+i)}, {vr(Y+8+i)}, vcc" for i in range(8)]
            vc = ["s_mov_b32 vcc_lo, 0xFFFF0000", "s_mov_b32 vcc_hi, 0xFFFF0000"]
            z2 = [f"ds_swizzle_b32 {vr(Y+4+i)}, {vr(Y+i)} offset:0x401F" for i in range(4)]
        if LW == "d":
            s = vc + sz + ["s_waitcnt lgkmcnt(12)", P0[0], P1[0]] + cm[0:4] + [P0[1]] + cm[4:8] + [P1[1]] + e[0:8] + d[0:8]
            s += cv(0) + r[0:4] + ["s_waitcnt lgkmcnt(0)", P2[0]] + r[4:8] + [P2[1]] + cv(1) + [P3[0]] + c[0:4] + [P3[1]]
            s += z2 + p["rb"] + p["qw"][1:] + p["ptr"] + cv(2) + cv(3)
        if LW == "e":
            s = vc + sz + ["s_waitcnt lgkmcnt(12)", P0[0]] + cm[0:4] + [P0[1]] + cm[4:8] + [P1[0]] + e[0:3] + [P1[1]] + e[3:8] + d[0:8]
            s += cv(0) + r[0:2] + ["s_waitcnt lgkmcnt(0)", P2[0]] + r[2:5] + [P2[1]] + r[5:8] + cv(1) + [P3[0]] + c[0:4] + z2 + [P3[1]]
            s += p["rb"] + p["qw"][1:] + p["ptr"] + cv(2) + cv(3)
        if LW == "f":
            s = vc + sz + cm + e[0:2] + ["s_waitcnt lgkmcnt(4)", P0[0]] + e[2:5] + [P0[1]] + e[5:8] + [P1[0]] + d[0:4] + [P1[1]] + d[4:8] + r[0:4]
            s += cv(0) + r[4:8] + cv(1)
            s += ["s_waitcnt lgkmcnt(0)", P2[0]] + c[0:4] + [P2[1]] + z2 + p["qw"][1:5] + [P3[0]] + p["ptr"] + [P3[1]]
            s += p["rb"] + p["qw"][5:] + cv(2) + cv(3)
        if LW == "c":
            s = sw + e[0:8] + ["s_waitcnt lgkmcnt(4)"]
            s += [P0[0]] + d[0:4] + [P1[0]] + d[4:8] + [P0[1]] + r[0:3] + [P1[1]] + r[3:8] + c[0:4] + mv
            s += cv(0) + ["s_waitcnt lgkmcnt(0)", P2[0]] + s2 + [P2[1]] + cv(1) + [P3[0]] + p["qw"][1:] + [P3[1]]
            s += p["rb"] + p["ptr"] + cv(2) + cv(3)
        return s
    s = e[0:8] + ["s_waitcnt lgkmcnt(4)"]
    if F16:
        s += [P0[0]] + e[8:11] + [P0[1]] + e[11:14] + [P1[0]] + e[14:16] + c[0:2] + [P1[1]] + c[2:8] + d
        s += cv(0) + cv(1) + r[:3]
        s += ["s_waitcnt lgkmcnt(0)", P2[0]] + r[3:6] + [P2[1]] + r[6:9] + [P3[0]] + r[9:12] + [P3[1]]
        s += p["rb"] + r[12:] + p["qw"][1:] + p["ptr"] + cv(2) + cv(3)
        return s
    FW = OPT("fw", "a")
    W4, W0 = "s_waitcnt lgkmcnt(4)", "s_waitcnt lgkmcnt(0)"
    if FW == "b":
        s = e + d + [W4, P0[0]] + r[0:4] + [P1[0]] + r[4:8] + [P0[1]] + r[8:12] + [P1[1]] + r[12:16] + c
        s += cv(0) + [W0, P2[0]] + cv(1)[:4] + [P2[1]] + cv(1)[4:] + [P3[0]] + p["qw"][1:5] + [P3[1]]
        return s + p["rb"] + p["qw"][5:] + p["ptr"] + cv(2) + cv(3)
    if FW == "c":
        s = e + [W4, P0[0]] + d[0:4] + [P1[0]] + d[4:8] + [P0[1]] + d[8:12] + [P1[1]] + d[12:16] + r[0:8]
        s += cv(0) + [W0, P2[0]] + r[8:12] + [P2[1]] + r[12:16] + cv(1) + [P3[0]] + c[0:4] + [P3[1]] + c[4:]
        return s + p["rb"] + p["qw"][1:] + p["ptr"] + cv(2) + cv(3)
    if FW == "f":
        k, g = int(OPT("fs", "4")), int(OPT("fg", "3"))
        pm_ = [P0[0], P1[0], P0[1], P1[1]] if FL("fi") else [P0[0], P0[1], P1[0], P1[1]]
        ed = e + d
        s = ed[0:k] + [W4, pm_[0]] + ed[k:k+g] + [pm_[1]] + ed[k+g:k+2*g] + [pm_[2]] + ed[k+2*g:k+3*g] + [pm_[3]] + ed[k+3*g:]
        s += cv(0) + cv(1) + r[:8] + c[:4]
        s += [W0, P2[0]] + r[8:11] + [P2[1]] + r[11:14] + [P3[0]] + r[14:16] + [P3[1]]
        return s + p["rb"] + c[4:] + p["qw"][1:] + p["ptr"] + cv(2) + cv(3)
    if FW in "gh":
        k = 8 if FW == "g" else 4
        s = e[0:k] + [W4, P0[0]] + e[k:k+3] + [P0[1]] + e[k+3:k+6] + [P1[0]] + e[k+6:16] + d[0:2] + [P1[1]] + d[2:8]
        s += cv(0) + [W0, P2[0]] + d[8:12] + [P2[1]] + d[12:16] + cv(1) + [P3[0]] + r[0:4] + [P3[1]] + r[4:16] + c
        return s + p["rb"] + cv(2) + p["qw"][1:] + p["ptr"] + cv(3)
    if FW == "i":
        s += [P0[0]] + e[8:11] + [P0[1]] + e[11:14] + [P1[0]] + e[14:16] + d[0:2] + [P1[1]] + d[2:16]
        s += r[:4] + cv(0) + [W0, P2[0]] + r[4:8] + [P2[1]] + cv(1) + [P3[0]] + r[8:12] + [P3[1]] + r[12:16] + c
        return s + p["rb"] + cv(2) + p["qw"][1:] + p["ptr"] + cv(3)
    if FW == "j":
        s += [P0[0]] + e[8:11] + [P0[1]] + e[11:14] + [P1[0]] + e[14:16] + d[0:2] + [P1[1]] + d[2:16]
        s += cv(0) + cv(1) + r[:12] + c[:6]
        s += [W0, P2[0]] + r[12:14] + [P2[1]] + r[14:16] + [P3[0]] + c[6:] + [P3[1]]
        return s + p["rb"] + p["qw"][1:] + p["ptr"] + cv(2) + cv(3)
    if FW in "de":
        def PX(T, Dr):
            D = vr(Dr, 16)
            return [f"{MF32} {D}, {vr(fr(T,0),4)}, {vr(v.WD+8*T,4)}, {vr(v.WAC+16*T,16)}",
                    f"{MF32} {D}, {vr(fr(T,1),4)}, {vr(v.WD+8*T+4,4)}, {D}"]
        cx = lambda T, Dr: [f"v_cvt_pk_bf16_f32 {vr(v.WE + 8*T + i)}, {vr(Dr+2*i)}, {vr(Dr+2*i+1)}" for i in range(8)]
        Q2, Q3 = PX(2, X), PX(3, H)
        if FW == "d":
            s = e[0:8] + [W4, P0[0]] + e[8:11] + [P1[0]] + e[11:14] + [P0[1]] + e[14:16] + d[0:2] + [P1[1]] + d[2:8]
            s += [W0, Q2[0]] + d[8:12] + [Q2[1]] + d[12:16] + cv(0) + [Q3[0]] + r[0:4] + [Q3[1]] + r[4:16] + c
            return s + cv(1) + p["rb"] + cx(2, X) + p["qw"][1:] + p["ptr"] + cx(3, H)
        s = e + [W4, P0[0]] + d[0:3] + [P1[0]] + d[3:6] + [P0[1]] + d[6:9] + [P1[1]] + d[9:12]
        s += [W0, Q2[0]] + d[12:16] + [Q2[1]] + r[0:4] + cv(0) + [Q3[0]] + r[4:8] + [Q3[1]] + r[8:16] + c
        return s + cv(1) + p["rb"] + cx(2, X) + p["qw"][1:] + p["ptr"] + cx(3, H)
    s += [P0[0]] + e[8:11] + [P0[1]] + e[11:14] + [P1[0]] + e[14:16] + d[0:2] + [P1[1]] + d[2:16]
    s += cv(0) + cv(1) + r[:8] + c[:4]
    s += ["s_waitcnt lgkmcnt(0)", P2[0]] + r[8:11] + [P2[1]] + r[11:14] + [P3[0]] + r[14:16] + [P3[1]]
    s += p["rb"] + c[4:] + p["qw"][1:] + p["ptr"] + cv(2) + cv(3)
    return s

def diag_reads():
    X = v.X; BR = v.BR
    fr = lambda T, f: (X if T < 2 else BR) + 8 * (T & 1) + 4 * f
    rd = [f"ds_read_b128 {vr(fr(T, f), 4)}, {vr(v.aDiag+f)} offset:{528*T}" for T in range(4) for f in range(2)]
    return rd[:4], rd[4:], f"ds_write_b16 {vr(v.diagW)}, {vr(v.Q)}"

INLOOP = True
def ilog(u):
    if PROF:
        emit(pm(3)); a("s_waitcnt lgkmcnt(0)"); emit(pacc())
    if FL("ilog"):
        a("s_memtime s[80:81]"); a("s_waitcnt lgkmcnt(0)")
        a("s_sub_u32 s83, s80, s82"); a("s_mov_b32 s82, s80")
        a("s_min_u32 m0, s84, 11")
        if u % 2 == 0:
            a("s_movreld_b32 s56, s83")
        else:
            a("s_movrels_b32 s85, s56"); a("s_lshl_b32 s83, s83, 16"); a("s_or_b32 s85, s85, s83")
            a("s_movreld_b32 s56, s85"); a("s_add_u32 s84, s84, 1")

def vsync(st, pr, raise_at=None):
    st = list(st)
    RAISE = int(OPT("raise", "24")) if raise_at is None else raise_at
    k = len(st) - int(OPT("rdback", "10"))
    st = st[:k] + poll_rd() + st[k:]
    if RFL:
        st = st[:-RFL] + ["s_waitcnt lgkmcnt(0)", f"v_readfirstlane_b32 s{sCv}, {vr(v.tmp)}"] + st[-RFL:]
    if RAISE >= 0: st = st[:RAISE] + prio(pr[2]) + st[RAISE:]
    return st

def fsync(st, pr, light=False):
    st = vsync(st, pr, int(OPT("lraise" if light else "fraise", OPT("raise", "24"))))
    k = int(OPT("ltop" if light else "ftop", "-1"))
    if k >= 0: st = st[:k] + prio(3) + st[k:]
    return st

RFL = int(OPT("rfl", "0"))
EARLY = int(OPT("early", "0"))
def house(u):
    if u == 7:
        a(f"v_add_u32 {vr(v.idxA)}, 512, {vr(v.idxA)}")
        a(f"v_add_u32 {vr(v.maskA)}, 512, {vr(v.maskA)}")
        a(f"s_lshr_b64 {sp(sFIRST)}, {sp(sFIRST)}, 8")
        a(f"s_lshr_b64 {sp(sLAST)}, {sp(sLAST)}, 8")
        a(f"s_lshr_b64 {sp(sEND)}, {sp(sEND)}, 8")
        if LIGHT: a(f"s_lshr_b64 {sp(sLIGHT)}, {sp(sLIGHT)}, 8")
def loop(L, pr):
    VMW = "s_waitcnt lgkmcnt(0)" if FL("novm") else "s_waitcnt vmcnt(8)"
    emit(prio(pr[0]))
    rest_v = {}
    for u in range(8):
        mp = m_phase(u)
        if EARLY:
            if u == 0: emit(mp[:NH])
            a.label(f"{L}x{u}")
            a.begin_auto()
            emit(mp[NH:])
            a.end_auto(init=[{("v", v.H + 4*j + k) for k in range(4)} for j in range(NH)])
        else:
            a.label(f"{L}b{u}")
            emit(pm(0))
            a.begin_auto()
            emit(mp)
            a.end_auto()
        a(f"s_bitcmp1_b32 s{sFIRST}, {u+1}")
        a(f"s_cbranch_scc1 {L}first{u}")
        if TRIM:
            G6, G7, Z0, Z1 = m_rest(u)
            emit([G6, f"s_bitcmp1_b32 s{sLAST}, {u}", VMW + (" lgkmcnt(0)" if "vmcnt" in VMW else "")] + arrive() + [G7, Z0, Z1])
        else:
            a(f"s_bitcmp1_b32 s{sLAST}, {u}")
            a(VMW)
            emit(arrive())
        a(f"s_cbranch_scc1 {L}epi{u}")
        a.label(f"{L}done{u}")
        emit(pm(1))
        emit(prio(pr[1]))
        if EARLY:
            st = list(sig_stream())
            RAISE = int(OPT("raise", "24"))
            head, tail = st[:-EARLY], st[-EARLY:]
            k = len(head) - int(OPT("rdback", "10"))
            head = head[:k] + poll_rd() + head[k:]
            if RAISE >= 0: head = head[:RAISE] + prio(pr[2]) + head[RAISE:]
            emit(head)
            a("s_waitcnt lgkmcnt(0)")
            a(f"v_readfirstlane_b32 s{sCv}, {vr(v.tmp)}")
            emit(tail[:2])
            a(f"s_cmp_ge_u32 s{sCv}, s{sTgtC}")
            a(f"s_cbranch_scc0 {L}slow{u}")
            a.label(f"{L}back{u}")
            rh = pieces((u + 1) & 7, 0)["Rh"][:NH]
            t2 = tail[2:]
            rest_v[u] = t2
            HP = int(OPT("hpos", "0"))
            emit(t2[:HP])
            for j, x in enumerate(t2[HP:]):
                if j < NH: emit([rh[j]])
                emit([x])
            house(u)
            emit(prio(pr[0]) or ["s_nop 0"])
            if u == 7: a(f"s_branch {L}x0")
        else:
            emit(vsync(sig_stream(), pr))
            a.label(f"{L}vj{u}")
            emit(pm(2))
            house(u)
            if RFL == 0:
                a("s_waitcnt lgkmcnt(0)")
                a(f"v_readfirstlane_b32 s{sCv}, {vr(v.tmp)}")
            emit(prio(pr[0]) or ["s_nop 0"])
            a(f"s_cmp_ge_u32 s{sCv}, s{sTgtC}")
            a(f"s_cbranch_scc0 {L}slow{u}")
            ilog(u)
            if u == 7: a(f"s_branch {L}b0")
    for u in range(8):
        a.label(f"{L}first{u}")
        r01, r23, qw = diag_reads()
        if TRIM:
            G6, G7, Z0, Z1 = m_rest(u)
            emit([G6, G7, "s_waitcnt lgkmcnt(0)", Z0, Z1])
        emit(r01 + [qw])
        a(f"s_bitcmp1_b32 s{sLAST}, {u}")
        a(VMW)
        emit(arrive())
        emit(r23)
        a(f"s_cbranch_scc1 {L}fepi{u}")
        a.label(f"{L}fdone{u}")
        emit(prio(pr[1]))
        if LIGHT:
            a(f"s_bitcmp1_b32 s{sLIGHT}, {u+1}")
            a(f"s_cbranch_scc1 {L}light{u}")
        a.begin_auto()
        emit(fsync(v_prep(pr[1]), pr))
        a.end_auto()
        if EARLY:
            house(u)
            if RFL == 0:
                a("s_waitcnt lgkmcnt(0)")
                a(f"v_readfirstlane_b32 s{sCv}, {vr(v.tmp)}")
            emit(prio(pr[0]) or ["s_nop 0"])
            a(f"s_cmp_ge_u32 s{sCv}, s{sTgtC}")
            a(f"s_cbranch_scc0 {L}fslow{u}")
            a.label(f"{L}fback{u}")
            emit(pieces((u + 1) & 7, 0)["Rh"][:NH])
            a(f"s_branch {L}x{(u+1)&7}")
        else:
            a(f"s_branch {L}vj{u}")
    for u in range(8 if LIGHT else 0):
        a.label(f"{L}light{u}")
        a.begin_auto()
        emit(fsync(v_prep(pr[1], True), pr, True))
        a.end_auto()
        a(f"s_branch {L}vj{u}")
    for u in range(8):
        a.label(f"{L}epi{u}")
        epilogue()
        a(f"s_branch {L}done{u}")
        a.label(f"{L}fepi{u}")
        epilogue()
        a(f"s_branch {L}fdone{u}")
    spinloop = lambda lab: poll_rd() + ["s_waitcnt lgkmcnt(0)", f"v_readfirstlane_b32 s{sCv}, {vr(v.tmp)}",
                                        f"s_cmp_ge_u32 s{sCv}, s{sTgtC}", f"s_cbranch_scc0 {lab}"]
    for u in range(8):
        a.label(f"{L}slow{u}")
        a(f"s_cmp_eq_u32 s{sTgtC}, -1")
        a(f"s_cbranch_scc1 {L}{'vend' if EARLY else 'stub'}{u}")
        a.label(f"{L}spin{u}")
        emit(spinloop(f"{L}spin{u}"))
        a(f"s_branch {L}{'back' + str(u) if EARLY else 'b' + str((u+1)&7)}")
        if EARLY:
            a.label(f"{L}fslow{u}")
            a(f"s_cmp_eq_u32 s{sTgtC}, -1")
            a(f"s_cbranch_scc1 {L}stub{u}")
            a.label(f"{L}fspin{u}")
            emit(spinloop(f"{L}fspin{u}"))
            a(f"s_branch {L}fback{u}")
    for u in range(8):
        if EARLY:
            a.label(f"{L}vend{u}")
            emit(rest_v[u])
            house(u)
        a.label(f"{L}stub{u}")
        a(f"s_mov_b32 s{sSb}, {((u-1)&7)*8192}")
        a(f"s_mov_b32 s{sSc}, {u*8192}")
        a(f"s_mov_b32 s{sPb}, {((u+1)&1)*256}")
        a(f"s_mov_b32 s{sPc}, {(u&1)*256}")
        a(f"s_lshr_b64 {sp(sLAST)}, {sp(sLAST)}, {u+1 if u < 7 else 0}") if u < 7 else None
        a(f"s_branch L_tail")
sSb, sSc, sMo, sPb, sPc = [sT0 + i for i in range(5)]
PA = [int(x) for x in OPT("pa", "302")]
PB = [int(x) for x in OPT("pb", "302")]
TWO = PA != PB
if TWO:
    a(f"s_cmp_eq_u32 s{sFav}, {OPT('fav', '1')}")
    a("s_cbranch_scc1 LA_entry")
    loop("LB_", PB)
    a.label("LA_entry")
    loop("LA_", PA)
else:
    loop("L_", PA)
INLOOP = False

def tail_g2(sS, part_reg):
    H = v.H; X = v.X
    for k in range(4): a(f"v_add_u32 {vr(H+20+k)}, s{sS}, {vr(v.aT+k)}")
    for du in range(2):
        for dt in range(2):
            a(f"ds_read_b64_tr_b16 {vr(X + 4*dt + 2*du, 2)}, {vr(H+20 + 2*du + dt)}")
    a(f"ds_read_b128 {vr(X+8,4)}, {vr(part_reg)}")
    for dt in range(2):
        a(f"{MF16} {vr(v.D2+4*dt,4)}, {vr(X+8,4)}, {vr(X+4*dt,4)}, {vr(v.D2+4*dt,4)}")
H = v.H
a.label("L_tail")
a(f"s_mov_b32 s{sTgtC}, s{sTgtR}")
emit(prio(2))
spin("L_tspin0", None)
a.begin_auto()
emit(score_mfma())
a(f"v_add_u32 {vr(H+24)}, s{sPc}, {vr(v.partW)}")
emit(fin(0, H+24))
a(f"v_add_u32 {vr(H+26)}, s{sPb}, {vr(v.partR)}")
tail_g2(sSb, H+26)
a.end_auto()
a(f"s_bitcmp1_b32 s{sLAST}, 0")
a(f"s_cbranch_scc0 L_t1")
epilogue()
a.label("L_t1")
a(f"s_add_u32 s{sTgtC}, s{sTgtC}, 4")
emit(arrive())
spin("L_tspin", None)
a.begin_auto()
a(f"v_add_u32 {vr(H+26)}, s{sPc}, {vr(v.partR)}")
tail_g2(sSc, H+26)
a.end_auto()
epilogue()
if DEBUG_TS:
    ts(5)
    a(f"s_load_dwordx2 {sp(sTgt)}, s[0:1], 72")
    a("s_waitcnt vmcnt(0) lgkmcnt(0)")
    a(f"s_mov_b32 s{sTgt+2}, 0x100000")
    a(f"s_mov_b32 s{sTgt+3}, 0x00020000")
    a(f"s_lshl_b32 s{sT0+2}, s2, 2")
    a(f"s_add_u32 s{sT0+2}, s{sT0+2}, s{sW}")
    a(f"s_lshl_b32 s{sT0+2}, s{sT0+2}, 5")
    a(f"v_mov_b32 v0, s{sT0+2}")
    for k in range(6):
        a(f"v_mov_b32 v{4+k}, s{TSREG[k]}")
    a(f"s_lshl_b32 s3, s3, 8")
    a(f"s_or_b32 s3, s3, s{sNT}")
    a(f"v_mov_b32 v10, s3")
    a(f"s_getreg_b32 s{sT0+3}, hwreg(HW_REG_HW_ID)")
    a(f"s_getreg_b32 s{sT0+4}, hwreg(HW_REG_XCC_ID)")
    a(f"s_lshl_b32 s{sT0+4}, s{sT0+4}, 16")
    a(f"s_and_b32 s{sT0+3}, s{sT0+3}, 0xffff")
    a(f"s_or_b32 s{sT0+3}, s{sT0+3}, s{sT0+4}")
    a(f"v_mov_b32 v11, s{sT0+3}")
    a("s_mov_b64 exec, 1")
    a(f"buffer_store_dwordx4 v[4:7], v0, {srd(sTgt)}, 0 offen")
    a(f"buffer_store_dwordx4 v[8:11], v0, {srd(sTgt)}, 0 offen offset:16")
    if FL("ilog"):
        a("v_lshlrev_b32 v0, 1, v0"); a("v_add_u32 v0, 0x40000, v0")
        for k in range(12): a(f"v_mov_b32 v{12+k}, s{56+k}")
        a("v_mov_b32 v24, s86"); a("v_mov_b32 v25, s87")
        for k in range(4): a(f"buffer_store_dwordx4 v[{12+4*k}:{15+4*k}], v0, {srd(sTgt)}, 0 offen offset:{16*k}")
a("s_waitcnt vmcnt(0)")
a.label("L_end")
a("s_endpgm")

body_txt = a.finalize()
hdr = open("cdna_kernels/" + NAME + ".s.ref").read()
head = hdr[:hdr.index("; @launch")]
out = head + f"""; @launch grid=(256,1,1) block=(512,1,1) lds={LDS_BYTES}
.amdgcn_target "amdgcn-amd-amdhsa--gfx950"
.text
.globl {NAME}_kernel
.p2align 8
.type {NAME}_kernel,@function
{NAME}_kernel:
{body_txt}
.section .rodata,"a"
.p2align 6
.amdhsa_kernel {NAME}_kernel
  .amdhsa_next_free_vgpr {NVGPR}
  .amdhsa_next_free_sgpr 102
  .amdhsa_accum_offset 256
  .amdhsa_group_segment_fixed_size 0
  .amdhsa_kernarg_size 80
  .amdhsa_user_sgpr_count 2
  .amdhsa_user_sgpr_kernarg_segment_ptr 1
  .amdhsa_system_sgpr_workgroup_id_x 1
.end_amdhsa_kernel
"""
outp = [x for x in sys.argv[1:] if not x.startswith("--")]
path = outp[0] if outp else "cdna_kernels/" + NAME + ".s"
open(path, "w").write(out)
print("wrote", path, "lines", out.count("\n"), "nops", a.padded)
```
